```python
import torch

def _softmax(x, axis=-1):
    return torch.softmax(x, dim=axis)
def _gelu(x):
    return torch.nn.functional.gelu(x, approximate="tanh")
def _silu(x):
    return torch.nn.functional.silu(x)
def _sigmoid(x):
    return torch.sigmoid(x)
def _layernorm(x, axis=-1, eps=1e-5):
    m = x.mean(dim=axis, keepdim=True)
    v = x.var(dim=axis, keepdim=True, unbiased=False)
    return (x - m) / torch.sqrt(v + eps)
def _scatter_add(tgt, idx, src, axis=0):
    return tgt.clone().index_add_(axis, idx, src)
def _segment_sum(src, seg, n):
    out = torch.zeros((n,) + src.shape[1:], dtype=src.dtype)
    return out.index_add_(0, seg, src)
def _pad(x, pw):
    flat = tuple(v for pair in reversed(pw) for v in pair)
    return torch.nn.functional.pad(x, flat)

kernel_name = 'gated_mix__mha_block__dense_activation_squared_relu__prompt'

def setup_inputs():

    _w = (lambda a: (lambda t: t.to(torch.bfloat16) if t.is_floating_point() else t)(torch.as_tensor(a)))
    def _A_setup():
        B, S, D, H = 1, 2048, 512, 32
        return {
            "x": _w((lambda *s: torch.randn(*s, dtype=torch.bfloat16) * 0.05)(B, S, D)),
            "wqkv": _w((lambda *s: torch.randn(*s, dtype=torch.bfloat16) * 0.8)(D, 3 * D)),
            "wo": _w((lambda *s: torch.randn(*s, dtype=torch.bfloat16) * 0.1)(D, D)),
        }
    _A_in = _A_setup()

    def _B_setup():
        B, S, D, F = 1, 2048, 512, 1376
        return {
            "x": _w((lambda *s: torch.randn(*s, dtype=torch.bfloat16) * 0.05)(B, S, D)),
            "w1": _w((lambda *s: torch.randn(*s, dtype=torch.bfloat16) * 0.1)(D, F)),
            "b1": _w((lambda *s: torch.randn(*s, dtype=torch.bfloat16) * 0.1)(F)),
            "w2": _w((lambda *s: torch.randn(*s, dtype=torch.bfloat16) * 0.1)(F, D)),
            "b2": _w((lambda *s: torch.randn(*s, dtype=torch.bfloat16) * 0.05)(D)),
        }
    _B_in = _B_setup()

    return {
        "A_x": _A_in["x"],
        "A_wqkv": _A_in["wqkv"],
        "A_wo": _A_in["wo"],
        "B_x": _B_in["x"],
        "B_w1": _B_in["w1"],
        "B_b1": _B_in["b1"],
        "B_w2": _B_in["w2"],
        "B_b2": _B_in["b2"],
        "gate_w": _w((lambda *s: torch.randn(*s, dtype=torch.bfloat16) * 0.05)(512) * 16.0),
    }

def reference(A_x, A_wqkv, A_wo, B_x, B_w1, B_b1, B_w2, B_b2, gate_w):
    def _A_ref(x, wqkv, wo):
        B, S, D = x.shape
        H = 32
        Dh = D // H
        qkv = (lambda x, *d: x.permute(*d))((x @ wqkv).reshape(B, S, 3, H, Dh), 2, 0, 3, 1, 4)
        q, k, v = qkv[0], qkv[1], qkv[2]
        scores = torch.einsum("bhqd,bhkd->bhqk", q, k) * (Dh ** -0.5)
        p = _softmax(scores, axis=-1)
        o = torch.einsum("bhqk,bhkd->bhqd", p, v)
        return (lambda x, *d: x.permute(*d))(o, 0, 2, 1, 3).reshape(B, S, D) @ wo

    def _B_ref(x, w1, b1, w2, b2):
        h = torch.einsum("bsd,df->bsf", x, w1) + b1
        zero = torch.zeros_like(h)
        r = torch.where(h > zero, h, zero)
        h = r * r
        out = torch.einsum("bsf,fd->bsd", h, w2) + b2
        return out

    x = A_x
    g = _sigmoid((x * gate_w).sum(-1, keepdims=True))
    a = _A_ref(x, A_wqkv, A_wo)
    b = _B_ref(x, B_w1, B_b1, B_w2, B_b2)
    return g * a + (1 - g) * b
```

```python
import re

def v(i, n=1):
    return f"v{i}" if n == 1 else f"v[{i}:{i+n-1}]"
def s(i, n=1):
    return f"s{i}" if n == 1 else f"s[{i}:{i+n-1}]"

class Asm:
    def __init__(self):
        self.lines = []
        self.vm = []
        self.lg = []
    def __call__(self, txt):
        for l in txt.split("\n"):
            l = l.strip()
            if l:
                self.lines.append("    " + l)
    def raw(self, txt):
        self.lines.append(txt)
    def label(self, name):
        self.lines.append(f"{name}:")
    def c(self, txt):
        self.lines.append(f"    ; {txt}")
    def vmem(self, txt, tag=None):
        self(txt); self.vm.append(tag)
    def lds(self, txt, tag=None):
        self(txt); self.lg.append(tag)
    def wait_vm(self, tag=None, n=None):
        if n is None:
            if tag is None:
                n = 0
            else:
                idxs = [i for i, t in enumerate(self.vm) if t == tag]
                if not idxs:
                    return
                n = len(self.vm) - 1 - max(idxs)
        assert n <= 63, n
        if n < len(self.vm):
            self(f"s_waitcnt vmcnt({n})")
            self.vm = self.vm[len(self.vm) - n:] if n else []
    def wait_lg(self, tag=None, n=None):
        if n is None:
            if tag is None:
                n = 0
            else:
                idxs = [i for i, t in enumerate(self.lg) if t == tag]
                if not idxs:
                    return
                n = len(self.lg) - 1 - max(idxs)
        assert n <= 15, n
        if n < len(self.lg):
            self(f"s_waitcnt lgkmcnt({n})")
            self.lg = self.lg[len(self.lg) - n:] if n else []
    def stamp(self, i):
        if getattr(self, "stamps", False):
            op = "s_memrealtime" if getattr(self, "realtime", False) else "s_memtime"
            self(f"{op} s[{64+2*i}:{65+2*i}]")
            self("s_waitcnt lgkmcnt(0)")
    def rawstamp(self, i):
        if getattr(self, "stamps", False):
            self(f"s_memtime s[{64+2*i}:{65+2*i}]")
            self.lg.append("smem"); self.lg.append("smem")
    def rstamp(self, i):
        if getattr(self, "stamps", False):
            self(f"s_memrealtime s[{64+2*i}:{65+2*i}]")
            self("s_waitcnt lgkmcnt(0)")
    def dump_stamps(self, n, srd_ws, waves=8):
        if not getattr(self, "stamps", False): return
        self.rstamp(13); n = 14
        self("s_waitcnt vmcnt(0) lgkmcnt(0)")
        self(f"s_mul_i32 s60, s2, {waves}")
        self("s_add_u32 s60, s60, s3")
        self("s_lshl_b32 s60, s60, 7")
        self("s_add_u32 s60, s60, 0xE80000")
        self("v_mov_b32 v1, 0")
        for i in range(n):
            self(f"v_mov_b32 v2, s{64+2*i}")
            self(f"v_mov_b32 v3, s{65+2*i}")
            self(f"buffer_store_dwordx2 v[2:3], v1, s[{srd_ws}:{srd_ws+3}], s60 offen offset:{8*i}")
            self("s_nop 1")
    def text(self):
        return "\n".join(self.lines) + "\n"

def _regs(tok):
    tok = tok.strip()
    neg = tok.lstrip("-").strip("|")
    m = re.fullmatch(r"([vsa])(\d+)", neg)
    if m: return {(m.group(1), int(m.group(2)))}
    m = re.fullmatch(r"([vsa])\[(\d+):(\d+)\]", neg)
    if m: return {(m.group(1), i) for i in range(int(m.group(2)), int(m.group(3)) + 1)}
    if neg == "vcc": return {("s", 106), ("s", 107)}
    if neg == "m0": return {("s", 124)}
    if neg == "exec": return {("s", 126), ("s", 127)}
    return set()

TRANS = ("v_exp_", "v_log_", "v_rcp_", "v_rsq_", "v_sqrt_", "v_sin_", "v_cos_")

def parse(line):
    l = line.split(";")[0].strip()
    if not l or l.endswith(":") or l.startswith("."):
        return None
    parts = l.split(None, 1)
    op = parts[0]
    rest = parts[1] if len(parts) > 1 else ""
    toks = [t.strip() for t in re.split(r",(?![^\[]*\])", rest)]
    ops = []
    for t in toks:
        ops.append(t.split()[0] if t else t)
    d = dict(op=op, ops=ops, raw=l)
    rd, wr = set(), set()
    kind = "other"
    if op.startswith("v_mfma"):
        kind = "mfma"; wr = _regs(ops[0]); rd = _regs(ops[1]) | _regs(ops[2]) | _regs(ops[3])
        d["A"] = _regs(ops[1]); d["B"] = _regs(ops[2]); d["C"] = _regs(ops[3])
        d["passes"] = 8 if "32x32" in op else 4
    elif op.startswith("v_cmp"):
        kind = "valu"; wr = _regs(ops[0]);
        for o in ops[1:]: rd |= _regs(o)
        if op.startswith("v_cmpx"): wr |= _regs("exec")
    elif op.startswith("v_readfirstlane") or op.startswith("v_readlane"):
        kind = "valu"; wr = _regs(ops[0]); d["rfl"] = True
        for o in ops[1:]: rd |= _regs(o)
    elif op.startswith("v_"):
        kind = "valu"; wr = _regs(ops[0])
        start = 1
        if op.startswith(("v_add_co", "v_sub_co", "v_addc_co", "v_subb_co")):
            wr |= _regs(ops[1]); start = 2
        for o in ops[start:]: rd |= _regs(o)
        if op.startswith(("v_fmac", "v_mac", "v_dot2c", "v_pk_fmac")) or "sdwa" in op or "dpp" in l: rd |= _regs(ops[0])
        if op.startswith("v_permlane32_swap") or op.startswith("v_permlane16_swap"):
            wr |= _regs(ops[1]); rd |= _regs(ops[0]); d["perm"] = True
        if op.startswith("v_cndmask") and len(ops) == 3: rd |= _regs("vcc")
        if "row_" in l or "quad_perm" in l or "wave_" in l or "dpp" in l: d["dpp"] = True
        if op.startswith(TRANS): d["trans"] = True
    elif op.startswith("buffer_") or op.startswith("global_"):
        kind = "vmem"
        if "load" in op and " lds" not in l and not l.endswith("lds"):
            wr = _regs(ops[0])
            for o in ops[1:]: rd |= _regs(o)
        else:
            for o in ops: rd |= _regs(o)
            if "store" in op:
                if op.startswith("buffer_"): d["sdata"] = _regs(ops[0])
                else: d["sdata"] = _regs(ops[1])
                d["wide"] = op.endswith(("x3", "x4"))
        if " lds" in l or l.endswith("lds"): d["ldsdma"] = True
    elif op.startswith("ds_"):
        kind = "ds"
        if op.startswith("ds_read") or op.startswith("ds_bpermute") or op.startswith("ds_swizzle"):
            wr = _regs(ops[0])
            for o in ops[1:]: rd |= _regs(o)
        else:
            for o in ops: rd |= _regs(o)
    elif op.startswith("s_"):
        kind = "salu"
        if op in ("s_nop", "s_waitcnt", "s_barrier", "s_endpgm", "s_branch", "s_setprio", "s_sleep") or op.startswith("s_cbranch"):
            pass
        elif op.startswith("s_cmp") or op.startswith("s_bitcmp"):
            for o in ops: rd |= _regs(o)
        else:
            wr = _regs(ops[0])
            for o in ops[1:]: rd |= _regs(o)
            if "saveexec" in op: wr |= _regs("exec")
    d.update(kind=kind, rd=rd, wr=wr)
    if op == "s_nop":
        d["states"] = int(ops[0], 0) + 1
    else:
        d["states"] = 1
    return d

def check_hazards(text):
    ins = []
    for ln, line in enumerate(text.split("\n"), 1):
        p = parse(line)
        if p: p["ln"] = ln; ins.append(p)
    probs = []
    n = len(ins)
    for i, a in enumerate(ins):
        dist = 0
        for j in range(i + 1, min(n, i + 40)):
            b = ins[j]
            req = 0; why = ""
            def need(r, w):
                nonlocal req, why
                if r > req: req, why = r, w
            aw = a["wr"]
            if a["kind"] == "valu":
                vw = {r for r in aw if r[0] in "va"}
                sw = {r for r in aw if r[0] == "s"}
                if b["kind"] == "mfma" and vw & b["rd"]: need(2, "valu->mfma")
                if a.get("trans") and b["kind"] == "valu" and not b.get("trans") and vw & b["rd"]: need(1, "trans->valu")
                if a.get("trans") and b["kind"] == "mfma" and vw & b["rd"]: need(2, "trans->mfma")
                if b.get("rfl") and vw & b["rd"]: need(1, "valu->readlane")
                if b.get("perm") and vw & b["rd"]: need(2, "valu->permlane")
                if b.get("dpp") and vw & b["rd"]: need(2, "valu->dpp")
                if sw:
                    if b["kind"] == "vmem" and sw & b["rd"]: need(5, "valu sgpr->vmem")
                    if b["kind"] == "valu" and sw & b["rd"]: need(2, "valu sgpr->valu")
                    if b["kind"] == "salu" and sw & b["rd"]: need(1, "valu sgpr->salu(conservative)")
                    if ("s", 126) in sw and b["kind"] == "mfma": need(4, "valu exec->mfma")
            if a["kind"] == "mfma":
                D = aw; P = a["passes"]
                big = {4: 8, 8: 12}[P]; cpart = {4: 6, 8: 10}[P]; war = {4: 3, 8: 7}[P]
                if b["kind"] == "mfma":
                    if D & (b["A"] | b["B"]): need(big, "mfma D->mfma AB")
                    if D & b["C"] and not (b["C"] == D and b["passes"] == P): need(cpart, "mfma D->mfma C partial")
                    if (D & b["wr"]) and not (b["wr"] == D): need(cpart, "mfma D->mfma D partial")
                elif b["kind"] in ("valu", "vmem", "ds"):
                    if D & (b["rd"] | b["wr"]): need(big, "mfma D->valu/mem")
                if b["kind"] == "valu" and a["C"] & {r for r in b["wr"]}: need(war, "mfma C WAR valu")
            if a["kind"] == "salu" and ("s", 124) in aw and b.get("ldsdma"): need(1, "m0->ldsdma")
            if a["kind"] == "vmem" and a.get("wide") and b["kind"] == "valu" and a["sdata"] & b["wr"]: need(2, "store data WAR")
            if req > dist:
                probs.append(f"line {a['ln']} '{a['raw']}' -> line {b['ln']} '{b['raw']}': {why} needs {req}, has {dist}")
            dist += b["states"]
            if dist >= 20: break
            if b["op"] in ("s_branch", "s_endpgm"): break
    return probs
```

```python
from asmlib import *
from k1 import WS_Q, WS_K, WS_V, WS_O, WS_H, WS_G, WS_SIZE, srd, f32hex
import p1
from p1 import FQ, FH, FO, EPOCH, S_TAG, SRD_WS
import os
OPT = set(os.environ.get('FZOPT', '').split(','))

RING = 131072
QST = 143360
F0 = 20
NF = 43
LEAD = 3
PF0 = int(os.environ.get('PF0', '7'))
FTX = int(os.environ.get('FTX', '0'))
TIMEOUT = 1 << 14
HSC = '' if 'hplain' in OPT else ' sc1'
KSC = '' if 'kplain' in OPT else ' sc1'

def poll(a, name, uid, soffs, voff, vt, st, sleep=2):
    lab = f"L_{name}_poll{uid}"
    a(f"s_mov_b32 s{st}, {TIMEOUT}")
    a.label(lab)
    for i, so in enumerate(soffs):
        a(f"buffer_load_dword v{vt+i}, v{voff}, s[{SRD_WS}:{SRD_WS+3}], s{so} offen sc1")
    a("s_waitcnt vmcnt(0)")
    for i in range(len(soffs)):
        a(f"v_cmp_ne_u32 s[{st+2+2*i}:{st+3+2*i}], s{S_TAG}, v{vt+i}")
    a("s_nop 1")
    for i in range(1, len(soffs)):
        a(f"s_or_b64 s[{st+2}:{st+3}], s[{st+2}:{st+3}], s[{st+2+2*i}:{st+3+2*i}]")
    a(f"s_cmp_eq_u64 s[{st+2}:{st+3}], 0")
    a(f"s_cbranch_scc1 {lab}_ok")
    a(f"s_sleep {sleep}")
    a(f"s_sub_u32 s{st}, s{st}, 1")
    a(f"s_cmp_lg_u32 s{st}, 0")
    a(f"s_cbranch_scc1 {lab}")
    a.label(f"{lab}_ok")
    a.vm = []

def attn_ids(a):
    a("s_and_b32 s40, s2, 7")
    a("s_lshl_b32 s41, s40, 2")
    a("s_lshr_b32 s42, s2, 3")
    a("s_and_b32 s43, s42, 3")
    a("s_add_u32 s41, s41, s43")
    a("s_lshr_b32 s44, s2, 5")
    a("s_lshl_b32 s45, s41, 16")

def gen_fused(name, stamps=False):
    a = Asm(); a.stamps = stamps; a.realtime = 'rt' in OPT
    SRD_W2, SRD_B2, SRD_WO, SRD_OUT = 12, 16, 24, 28
    AKV, AKV2, AW, VWOFF, VL16 = 2, 3, 4, 5, 6
    AKV0 = 6
    G = 7
    Q = 8; KF = 12; V0 = 16; V1 = 20; P = 28; WF = 36
    S = [40, 56]; O = 72; ACC = 88; HF = 104
    TMP = 120
    OF = 136
    ACA = 200
    def code_prefetch(a):
        if 'nocodepf' in OPT: return
        a("s_cmp_lg_u32 s3, 7")
        a(f"s_cbranch_scc1 L_{name}_nocpf")
        a("s_getpc_b64 s[46:47]")
        a.label(f"L_{name}_pcbase")
        a(f"s_sub_u32 s52, s46, L_{name}_pcbase-{name}")
        a("s_subb_u32 s53, s47, 0")
        a(f"s_mov_b32 s54, L_{name}_codeend-{name}")
        a("s_mov_b32 s55, 0x20000")
        a("s_lshr_b32 s56, s2, 3")
        a("s_mul_i32 s56, s56, 16")
        a("v_add_u32 v1, s56, v0")
        a("v_lshlrev_b32 v1, 7, v1")
        a("s_mov_b64 exec, 0xffff")
        a("buffer_load_dword v254, v1, s[52:55], 0 offen")
        a("s_mov_b64 exec, -1")
        a.label(f"L_{name}_nocpf")

    a.raw(f".globl {name}\n.p2align 8\n.type {name},@function\n{name}:")
    a("s_cmp_ge_u32 s2, 256")
    a(f"s_cbranch_scc1 L_{name}_end")
    a.rstamp(12); a.stamp(0)
    if 'dbgspan' in OPT:
        a("s_memrealtime s[84:85]")
        a("s_memtime s[86:87]")
        a("s_load_dwordx2 s[88:89], s[0:1], 80")
        a("s_waitcnt lgkmcnt(0)")
    a("s_load_dwordx4 s[92:95], s[0:1], 48")
    a("s_load_dwordx2 s[96:97], s[0:1], 16")
    a("s_load_dwordx2 s[98:99], s[0:1], 72")
    p1.prologue_common(a, name)
    code_prefetch(a)
    def loader_tail(a):
        a("s_mov_b32 s34, 0")
        a("s_cmp_lg_u32 s3, 4")
        a(f"s_cbranch_scc1 L_{name}_p2")
        attn_ids(a)
        a("s_lshr_b32 s46, s41, 1")
        a("s_lshl_b32 s46, s46, 8")
        a(f"s_add_u32 s46, s46, 0x{FQ:x}")
        a("v_min_u32 v2, 47, v0")
        a("v_lshlrev_b32 v2, 2, v2")
        a.stamp(7)
        poll(a, name, "q", [46], 2, 3, 52, sleep=8)
        a.stamp(8)
        a("v_lshlrev_b32 v2, 4, v0")
        a("s_lshl_b32 s46, s44, 13")
        a("s_add_u32 s46, s46, s45")
        for i in range(8):
            a(f"s_mov_b32 m0, {i*2048}")
            a(f"s_add_u32 s48, s45, 0x{WS_K + i*1024:x}")
            a.vmem(f"buffer_load_dwordx4 v2, s[{SRD_WS}:{SRD_WS+3}], s48 offen sc1 lds")
            a(f"s_mov_b32 m0, {i*2048 + 1024}")
            a(f"s_add_u32 s48, s45, 0x{WS_V + i*1024:x}")
            a.vmem(f"buffer_load_dwordx4 v2, s[{SRD_WS}:{SRD_WS+3}], s48 offen sc1 lds")
            a(f"s_mov_b32 m0, {QST + i*1024}")
            a(f"s_add_u32 s48, s46, {i*1024}")
            a.vmem(f"buffer_load_dwordx4 v2, s[{SRD_WS}:{SRD_WS+3}], s48 offen sc1 lds")
        a.wait_vm()
        a.stamp(9)

    p1.gen_phase1(a, name, f"L_{name}_p2", loader_tail=loader_tail, defer_h=True)
    a.label(f"L_{name}_p2")
    a.vm = ["hst"]; a.lg = []
    attn_ids(a)
    srd(a, SRD_W2, 92, 1376*1024)
    srd(a, SRD_B2, 94, 1024)
    srd(a, SRD_WO, 96, 512*1024)
    srd(a, SRD_OUT, 98, 2048*1024)
    a(f"v_lshlrev_b32 v{VL16}, 4, v0")
    a("s_and_b32 s48, s3, 3")
    a("s_lshr_b32 s49, s3, 2")
    a("s_lshl_b32 s50, s49, 21")
    a("s_add_u32 s50, s50, s45")
    a("s_lshl_b32 s51, s48, 10")
    a("s_add_u32 s50, s50, s51")
    a(f"s_add_u32 s50, s50, 0x{WS_K:x}")
    a("s_lshl_b32 s51, s48, 11")
    a("s_lshl_b32 s52, s49, 10")
    a("s_add_u32 s51, s51, s52")
    def kvload(c):
        a(f"s_add_u32 m0, s51, {c*8192}")
        a(f"s_add_u32 s52, s50, {c*4096}")
        a.vmem(f"buffer_load_dwordx4 v{VL16}, s[{SRD_WS}:{SRD_WS+3}], s52 offen{KSC} lds", ("kv", c))
    a("s_lshr_b32 s55, s3, 1")
    a("s_and_b32 s55, s55, 1")
    a(f"s_xor_b32 s56, s44, {FTX}")
    a("s_lshl_b32 s56, s56, 7")
    a("s_lshl_b32 s57, s55, 6")
    a("s_add_u32 s56, s56, s57")
    a("v_lshrrev_b32 v1, 5, v0")
    a("v_lshlrev_b32 v1, 3, v1")
    for q in range(4):
        a.vmem(f"buffer_load_dwordx2 v[{HF+2*q}:{HF+2*q+1}], v1, s[{SRD_B2}:{SRD_B2+3}], s56 offen offset:{16*q}", "b2")
    a(f"v_add_u32 v{AKV}, {(20 - 1)*2048}, v{VL16}")
    a(f"v_add_u32 v{AKV2}, 0x10000, v{VL16}")
    a("v_and_b32 v1, 15, v0")
    a("v_lshrrev_b32 v1, 2, v1")
    a(f"v_lshrrev_b32 v{TMP+8}, 5, v0")
    a(f"v_lshlrev_b32 v{TMP+8}, 2, v{TMP+8}")
    a(f"v_add_u32 v1, v1, v{TMP+8}")
    a("v_lshlrev_b32 v1, 6, v1")
    a(f"v_lshrrev_b32 v{TMP+8}, 4, v0")
    a(f"v_and_b32 v{TMP+8}, 1, v{TMP+8}")
    a(f"v_lshlrev_b32 v{TMP+8}, 5, v{TMP+8}")
    a(f"v_add_u32 v1, v1, v{TMP+8}")
    a(f"v_and_b32 v{TMP+8}, 3, v0")
    a(f"v_lshlrev_b32 v{TMP+8}, 3, v{TMP+8}")
    a(f"v_add_u32 v{TMP+9}, v1, v{TMP+8}")
    a("s_lshl_b32 s58, s3, 12")
    a(f"s_add_u32 s58, s58, {RING}")
    a(f"v_add_u32 v{AW}, s58, v{TMP+9}")
    a(f"v_mov_b32 v{G}, v{TMP+9}")
    a("v_lshrrev_b32 v1, 2, v0")
    a("v_lshlrev_b32 v1, 10, v1")
    a(f"v_and_b32 v{TMP+8}, 3, v0")
    a(f"v_lshlrev_b32 v{TMP+8}, 4, v{TMP+8}")
    a(f"v_add_u32 v{VWOFF}, v1, v{TMP+8}")
    a("s_mul_i32 s59, s49, 43")
    a("s_lshl_b32 s60, s59, 14")
    a("s_add_u32 s60, s60, s56")
    a("s_lshl_b32 s61, s41, 1")
    a("s_and_b32 s62, s3, 1")
    a("s_add_u32 s61, s61, s62")
    a("s_mov_b32 s37, s61")
    a(f"s_mul_i32 s61, s61, {86*1024}")
    a("s_lshl_b32 s62, s59, 10")
    a("s_add_u32 s61, s61, s62")
    a(f"s_add_u32 s61, s61, 0x{WS_H:x}")
    a("v_and_b32 v1, 27, v0")
    a("v_cmp_eq_u32 vcc, 16, v1")
    a(f"v_mov_b32 v{TMP+8}, 0x3f803f80")
    a("v_mov_b32 v1, 0")
    a(f"v_cndmask_b32 v1, v1, v{TMP+8}, vcc")
    for r in list(range(V0, V0+4)) + list(range(V1, V1+4)):
        a(f"v_mov_b32 v{r}, v1")
    a("s_mov_b32 s32, 0x0000ffff")
    a("s_mov_b32 s33, 0x0000ffff")
    a("s_lshl_b32 s52, s3, 10")
    a(f"s_add_u32 s52, s52, {QST}")
    a(f"v_add_u32 v1, s52, v{VL16}")
    a.stamp(10)
    a("s_barrier")
    a.lds(f"ds_read_b128 v[{Q}:{Q+3}], v1", "Q")

    def bias_init():
        a.wait_vm("b2")
        for q in range(4):
            r = HF + 2*q
            a(f"v_lshlrev_b32 v{ACC+4*q}, 16, v{r}")
            a(f"v_and_b32 v{ACC+4*q+1}, 0xffff0000, v{r}")
            a(f"v_lshlrev_b32 v{ACC+4*q+2}, 16, v{r+1}")
            a(f"v_and_b32 v{ACC+4*q+3}, 0xffff0000, v{r+1}")
        a("s_cmp_eq_u32 s49, 0")
        a(f"s_cbranch_scc1 L_{name}_biasok")
        for r in range(16): a(f"v_mov_b32 v{ACC+r}, 0")
        a.label(f"L_{name}_biasok")

    LOOP0, LOOP1 = 20, 60
    inloop = [False]
    def kaddr(t, extra=0):
        if inloop[0]:
            off = (t - LOOP0 + 1)*2048 + extra
            return f"v{AKV} offset:{off}"
        off = t*2048 + extra
        if off < 65536: return f"v{AKV0} offset:{off}"
        return f"v{AKV2} offset:{off-65536}"
    def readK(t):
        a.lds(f"ds_read_b128 v[{KF}:{KF+3}], {kaddr(t)}", ("K", t))
    def readV(t0, t1):
        a("s_mov_b64 exec, s[32:33]")
        if t0 is not None: a.lds(f"ds_read_b128 v[{V0}:{V0+3}], {kaddr(t0, 1024)}", ("V0", t0))
        if t1 is not None: a.lds(f"ds_read_b128 v[{V1}:{V1+3}], {kaddr(t1, 1024+256)}", ("V1", t1))
        a("s_mov_b64 exec, -1")
    def QK(t):
        sb = S[t & 1]
        a(f"v_mfma_f32_32x32x16_bf16 v[{sb}:{sb+15}], v[{KF}:{KF+3}], v[{Q}:{Q+3}], 0")
    def PV0(t):
        C = "0" if t == 0 else f"v[{O}:{O+15}]"
        a(f"v_mfma_f32_32x32x16_bf16 v[{O}:{O+15}], v[{V0}:{V0+3}], v[{P}:{P+3}], {C}")
    def PV1(t):
        a(f"v_mfma_f32_32x32x16_bf16 v[{O}:{O+15}], v[{V1}:{V1+3}], v[{P+4}:{P+7}], v[{O}:{O+15}]")
    uid = [0]
    def group_barrier(grp, tag):
        uid[0] += 1
        lab = f"L_{name}_gb{uid[0]}"
        a(f"s_cmp_eq_u32 s49, {grp}")
        a(f"s_cbranch_scc0 {lab}")
        save = list(a.vm)
        if tag is not None: a.wait_vm(tag)
        a("s_barrier")
        a.label(lab)
        a.vm = save
    BARS = {7: ("kv", 8), 12: ("kv", 15)}
    WOIT = 6
    def cond_block(key, body):
        uid[0] += 1
        lab = f"L_{name}_cb{uid[0]}"
        a(f"s_cmp_eq_u32 s35, {WOIT}")
        a(f"s_cbranch_scc0 {lab}")
        save = list(a.vm)
        body()
        a.label(lab)
        a.vm = save
    def wo_loads(lo, hi):
        for i in range(lo, hi):
            if i == 0:
                a("s_lshl_b32 s38, s3, 13")
                a("s_lshl_b32 s39, s3, 16")
                a(f"s_xor_b32 s52, s44, {FTX}")
                a("s_lshl_b32 s52, s52, 7")
                a("s_add_u32 s39, s39, s52")
            a(f"s_add_u32 m0, s38, {i*1024}")
            a(f"s_add_u32 s52, s39, {(i >> 1)*16384 + (i & 1)*64}")
            a(f"buffer_load_dwordx4 v{VWOFF}, s[{SRD_WO}:{SRD_WO+3}], s52 offen lds")
    kv_next = [2]
    def Y(t):
        a("s_setprio 0")
        if t in BARS: group_barrier(0, BARS[t])
        if inloop[0] and t - LOOP0 == 1: cond_block("b0", lambda: group_barrier(0, None))
        if t + 1 <= 63: readK(t + 1)
        readV(t, t - 1 if t > 0 else None)
        f = t - F0
        if t == 3:
            a("s_cmp_eq_u32 s34, 0")
            a(f"s_cbranch_scc1 L_{name}_nohpub")
            save = list(a.vm)
            a.wait_vm("hst")
            a(f"v_mov_b32 v{TMP}, s{S_TAG}")
            a(f"v_mov_b32 v{TMP+1}, 0")
            a("s_mov_b64 exec, 1")
            a(f"buffer_store_dword v{TMP}, v{TMP+1}, s[{SRD_WS}:{SRD_WS+3}], s34 offen sc1")
            a("s_mov_b64 exec, -1")
            a.label(f"L_{name}_nohpub")
            a.vm = save
        if t == F0 - LEAD - 1:
            a("s_lshl_b32 s46, s37, 6")
            a(f"s_add_u32 s46, s46, 0x{FH:x}")
            a("v_and_b32 v1, 15, v0")
            a("v_lshlrev_b32 v1, 2, v1")
            poll(a, name, "h", [46], 1, TMP, 52)
        if 0 <= f < NF:
            a.wait_vm(("w", f))
            sl = f % 4
            a.lds(f"ds_read_b64_tr_b16 v[{WF}:{WF+1}], v{AW} offset:{sl*1024}", ("W", f))
            a.lds(f"ds_read_b64_tr_b16 v[{WF+2}:{WF+3}], v{AW} offset:{sl*1024+512}", ("W", f))
        if 0 <= f + LEAD < NF:
            g = f + LEAD
            hf = HF + 4*(g % 4)
            a(f"s_add_u32 s52, s61, {g*1024}")
            a.vmem(f"buffer_load_dwordx4 v[{hf}:{hf+3}], v{VL16}, s[{SRD_WS}:{SRD_WS+3}], s52 offen{HSC}", ("h", g))
            a(f"s_add_u32 m0, s58, {(g % 4)*1024}")
            a(f"s_add_u32 s52, s60, {g*16384}")
            a.vmem(f"buffer_load_dwordx4 v{VWOFF}, s[{SRD_W2}:{SRD_W2+3}], s52 offen lds", ("w", g))
        for _ in range(2):
            if kv_next[0] <= 15:
                kvload(kv_next[0]); kv_next[0] += 1
        if 'now2pf' not in OPT and PF0 <= t < PF0 + 8:
            i = t - PF0
            if i == 0:
                a("s_lshr_b32 s38, s2, 3")
                a("s_lshl_b32 s38, s38, 3")
                a("s_add_u32 s38, s38, s3")
                a("s_lshl_b32 s39, s38, 11")
                a("s_mul_i32 s38, s38, 5504")
            if i < 6:
                a(f"s_add_u32 s52, s38, {i*1024}")
                a.vmem(f"buffer_load_dwordx4 v[{TMP+12}:{TMP+15}], v{VL16}, s[{SRD_W2}:{SRD_W2+3}], s52 offen", ("pf", i))
            else:
                a(f"s_add_u32 s52, s39, {(i-6)*1024}")
                a.vmem(f"buffer_load_dwordx4 v[{TMP+12}:{TMP+15}], v{VL16}, s[{SRD_WO}:{SRD_WO+3}], s52 offen", ("pf", i))
        if inloop[0] and t - LOOP0 >= 1:
            j = t - LOOP0
            cond_block("wo", lambda: wo_loads(3*(j - 1), min(8, 3*j)))
        a.wait_lg()
        if (t + 1) in BARS: group_barrier(1, BARS[t + 1])
        if inloop[0] and t - LOOP0 == 0: cond_block("b1", lambda: group_barrier(1, None))
    def X(t):
        sb = S[t & 1]
        e = lambda i: a(f"v_exp_f32 v{sb+i}, v{sb+i}")
        c = lambda i: a(f"v_cvt_pk_bf16_f32 v{P+i}, v{sb+2*i}, v{sb+2*i+1}")
        e(0)
        a("s_setprio 2")
        e(1)
        if t > 0: PV1(t - 1)
        e(2); e(3); e(4); e(5)
        if t < 63: QK(t + 1)
        e(6); e(7); c(0); c(1); c(2); e(8); c(3); e(9); e(10)
        PV0(t)
        e(11); e(12); e(13); e(14)
        f = t - F0
        if 0 <= f < NF:
            hf = HF + 4*(f % 4)
            a(f"v_mfma_f32_32x32x16_bf16 v[{ACC}:{ACC+15}], v[{WF}:{WF+3}], v[{hf}:{hf+3}], v[{ACC}:{ACC+15}]")
        e(15); c(4); c(5); c(6); c(7)

    readK(0)
    a.wait_lg()
    QK(0)
    a("s_nop 7")
    def tile(t):
        Y(t)
        if t == 2: bias_init()
        X(t)
        if 'p3st' in OPT:
            if t == 19: a.stamp(11)
            if t == 7: a.stamp(8)
    for t in range(0, LOOP0): tile(t)
    a("s_mov_b32 s35, 10")
    a.label(f"L_{name}_loop")
    inloop[0] = True
    vm_entry = list(a.vm)
    for t in range(LOOP0, LOOP0 + 4):
        if t == LOOP0 + 3:
            pass
        Y(t)
        if t == LOOP0 + 3:
            a("s_add_u32 s61, s61, 4096")
            a("s_add_u32 s60, s60, 65536")
            a("s_sub_u32 s35, s35, 1")
        X(t)
    a(f"v_add_u32 v{AKV}, 8192, v{AKV}")
    a("s_cmp_lg_u32 s35, 0")
    a(f"s_cbranch_scc1 L_{name}_loop")
    inloop[0] = False
    shift = LOOP1 - LOOP0 - 4
    a.vm = [(x[0], x[1] + shift) if isinstance(x, tuple) and x[0] in ("h", "w") else x for x in a.vm]
    if 'p3st' in OPT: a.stamp(7)
    for t in range(LOOP1, 64): tile(t)
    a("s_setprio 0")
    readV(None, 63)
    a.wait_lg()
    a("s_nop 1")
    PV1(63)
    a("s_nop 15")
    a(f"v_add_f32 v1, |v{O}|, |v{O+1}|")
    for r in range(2, 8):
        a(f"v_add_f32 v1, v1, |v{O+r}|")
    a(f"s_mov_b32 s40, {f32hex(2.0**-60)}")
    a(f"s_mov_b32 s42, {f32hex(2.0**60)}")
    a(f"s_mov_b32 s43, {f32hex(2.0**120)}")
    a(f"v_cmp_lt_f32 s[46:47], s40, v{O+8}")
    a(f"v_cmp_gt_f32 s[52:53], s42, v{O+8}")
    a(f"v_cmp_gt_f32 s[54:55], s43, v1")
    a("s_nop 1")
    a("s_and_b64 s[46:47], s[46:47], s[52:53]")
    a("s_and_b64 s[46:47], s[46:47], s[54:55]")
    a("s_cmp_eq_u64 s[46:47], -1")
    a(f"s_cbranch_scc0 L_{name}_slow")
    a.label(f"L_{name}_fin")
    a(f"v_rcp_f32 v1, v{O+8}")
    a("s_nop 0")
    for r in range(8): a(f"v_mul_f32 v{O+r}, v{O+r}, v1")
    for q in range(4): a(f"v_cvt_pk_bf16_f32 v{P+q}, v{O+2*q}, v{O+2*q+1}")
    a("s_lshl_b32 s46, s44, 3")
    a("s_add_u32 s46, s46, s3")
    a("s_lshl_b32 s47, s46, 5")
    a("s_add_u32 s47, s47, s41")
    a("s_lshl_b32 s48, s47, 10")
    a(f"s_add_u32 s48, s48, 0x{WS_O:x}")
    a(f"buffer_store_dwordx4 v[{P}:{P+3}], v{VL16}, s[{SRD_WS}:{SRD_WS+3}], s48 offen sc1")
    a("s_lshl_b32 s47, s47, 2")
    a(f"s_add_u32 s47, s47, 0x{FO:x}")
    p1.publish(a, 47, TMP)
    a.vm = []
    if 'p3st' in OPT: a.stamp(1)
    a("s_cmp_lg_u32 s3, 0")
    a(f"s_cbranch_scc1 L_{name}_nopollo")
    a("s_lshl_b32 s46, s41, 8")
    a(f"s_add_u32 s46, s46, 0x{FO:x}")
    a("v_lshlrev_b32 v1, 2, v0")
    poll(a, name, "o", [46], 1, TMP, 52, sleep=4)
    a.label(f"L_{name}_nopollo")
    a("s_barrier")
    if 'p3st' in OPT: a.stamp(2)
    a("s_lshl_b32 s46, s41, 16")
    a("s_lshl_b32 s47, s3, 13")
    a("s_add_u32 s46, s46, s47")
    a(f"s_add_u32 s46, s46, 0x{WS_O:x}")
    a("s_add_u32 s47, s47, 65536")
    for i in range(8):
        a(f"s_add_u32 m0, s47, {i*1024}")
        a(f"s_add_u32 s48, s46, {i*1024}")
        a.vmem(f"buffer_load_dwordx4 v{VL16}, s[{SRD_WS}:{SRD_WS+3}], s48 offen sc1 lds", ("o", i))
    a("v_and_b32 v1, 31, v0")
    a(f"v_lshlrev_b32 v{TMP}, 2, v1")
    a("s_lshl_b32 s47, s37, 7")
    a(f"s_add_u32 s47, s47, 0x{WS_G:x}")
    a.vmem(f"buffer_load_dword v{TMP+1}, v{TMP}, s[{SRD_WS}:{SRD_WS+3}], s47 offen sc1", "g")
    a("s_lshl_b32 s47, s49, 15")
    a("s_lshr_b32 s48, s3, 1")
    a("s_and_b32 s48, s48, 1")
    a("s_lshl_b32 s48, s48, 10")
    a("s_add_u32 s47, s47, s48")
    a(f"v_add_u32 v{AW}, s47, v{G}")
    a("s_and_b32 s47, s3, 1")
    a("s_lshl_b32 s47, s47, 15")
    a("s_lshl_b32 s48, s49, 14")
    a("s_add_u32 s47, s47, s48")
    a("s_add_u32 s47, s47, 65536")
    a(f"v_add_u32 v{AKV}, s47, v{VL16}")
    order = [i for i in range(16) if (i & 7) < 4] + [i for i in range(16) if (i & 7) >= 4]
    def rdw(k):
        i = order[k]
        r = OF + 8*(k % 4)
        a.lds(f"ds_read_b64_tr_b16 v[{r}:{r+1}], v{AW} offset:{i*2048}", ("W3", k))
        a.lds(f"ds_read_b64_tr_b16 v[{r+2}:{r+3}], v{AW} offset:{i*2048+512}", ("W3", k))
        a.lds(f"ds_read_b128 v[{r+4}:{r+7}], v{AKV} offset:{i*1024}", ("W3", k))
    def mm(k):
        a.wait_lg(("W3", k))
        r = OF + 8*(k % 4)
        C = "0" if k == 0 else f"v[{ACA}:{ACA+15}]"
        a(f"v_mfma_f32_32x32x16_bf16 v[{ACA}:{ACA+15}], v[{r}:{r+3}], v[{r+4}:{r+7}], {C}")
    a.wait_vm(("o", 3))
    a("s_barrier")
    if 'p3st' in OPT: a.stamp(9)
    rdw(0); rdw(1); rdw(2)
    for k in range(8):
        if k + 3 < 8: rdw(k + 3)
        if k == 5:
            a.wait_vm(("o", 7))
            a("s_barrier")
            rdw(8)
        if k == 6: rdw(9)
        if k == 7: rdw(10)
        mm(k)
    for k in range(8, 16):
        if k + 3 < 16: rdw(k + 3)
        mm(k)
    a.wait_vm()
    a("v_lshlrev_b32 v1, 10, v1")
    a(f"v_lshrrev_b32 v{TMP+2}, 5, v0")
    a(f"v_lshlrev_b32 v{TMP+2}, 4, v{TMP+2}")
    a(f"v_add_u32 v{TMP+2}, v1, v{TMP+2}")
    a("s_lshl_b32 s46, s37, 15")
    a("s_add_u32 s46, s46, s56")
    a("s_nop 7")
    a("s_nop 3")
    for r in range(16):
        a(f"v_sub_f32 v{ACA+r}, v{ACA+r}, v{ACC+r}")
    for r in range(16):
        a(f"v_fma_f32 v{ACA+r}, v{TMP+1}, v{ACA+r}, v{ACC+r}")
    a(f"v_add_u32 v1, s58, v{VL16}")
    a("s_cmp_eq_u32 s49, 0")
    a(f"s_cbranch_scc1 L_{name}_red0")
    for q in range(4):
        a(f"ds_write_b128 v1, v[{ACA+4*q}:{ACA+4*q+3}] offset:{q*1024}")
    a("s_waitcnt lgkmcnt(0)")
    a("s_barrier")
    if 'p3st' in OPT: a.stamp(3)
    a.dump_stamps(12, SRD_WS)
    a("s_endpgm")
    a.label(f"L_{name}_red0")
    a("s_barrier")
    for q in range(4):
        a(f"ds_read_b128 v[{OF+4*q}:{OF+4*q+3}], v1 offset:{4*4096 + q*1024}")
    a("s_waitcnt lgkmcnt(0)")
    for r in range(16): a(f"v_add_f32 v{ACA+r}, v{ACA+r}, v{OF+r}")
    B = OF + 16
    for q in range(4):
        a(f"v_cvt_pk_bf16_f32 v{B+2*q}, v{ACA+4*q}, v{ACA+4*q+1}")
        a(f"v_cvt_pk_bf16_f32 v{B+2*q+1}, v{ACA+4*q+2}, v{ACA+4*q+3}")
    a("s_nop 1")
    for qp in range(2):
        a(f"v_permlane32_swap_b32 v{B+4*qp}, v{B+4*qp+2}")
        a(f"v_permlane32_swap_b32 v{B+4*qp+1}, v{B+4*qp+3}")
    for qp in range(2):
        a(f"buffer_store_dwordx4 v[{B+4*qp}:{B+4*qp+3}], v{TMP+2}, s[{SRD_OUT}:{SRD_OUT+3}], s46 offen offset:{qp*32}")
    if 'dbgspan' in OPT:
        a("s_cmp_lg_u32 s3, 0")
        a(f"s_cbranch_scc1 L_{name}_nodbg")
        a("s_memrealtime s[80:81]")
        a("s_memtime s[82:83]")
        a("s_waitcnt lgkmcnt(0)")
        a("s_mov_b32 s68, s88")
        a("s_mov_b32 s69, s89")
        a("s_mov_b32 s70, 256")
        a("s_mov_b32 s71, 0x20000")
        a("s_not_b32 s72, s84")
        a("s_sub_u32 s73, s80, s84")
        a("s_sub_u32 s74, s82, s86")
        a(f"v_mov_b32 v{TMP}, 0")
        a(f"v_mov_b32 v{TMP+1}, s80")
        a(f"v_mov_b32 v{TMP+3}, s72")
        a(f"v_mov_b32 v{TMP+4}, s73")
        a(f"v_mov_b32 v{TMP+5}, s74")
        a("s_mov_b64 exec, 1")
        a(f"buffer_atomic_umax v{TMP+1}, v{TMP}, s[68:71], 0 offen offset:0")
        a(f"buffer_atomic_umax v{TMP+3}, v{TMP}, s[68:71], 0 offen offset:4")
        a(f"buffer_atomic_umax v{TMP+4}, v{TMP}, s[68:71], 0 offen offset:8")
        a(f"buffer_atomic_umax v{TMP+5}, v{TMP}, s[68:71], 0 offen offset:12")
        a("s_mov_b64 exec, -1")
        a.label(f"L_{name}_nodbg")
    a("s_or_b32 s47, s2, s3")
    a("s_cmp_lg_u32 s47, 0")
    a(f"s_cbranch_scc1 L_{name}_noep")
    a(f"s_mov_b32 s47, 0x{EPOCH:x}")
    a(f"v_mov_b32 v{TMP}, s{S_TAG}")
    a(f"v_mov_b32 v{TMP+1}, 0")
    a("s_mov_b64 exec, 1")
    a(f"buffer_store_dword v{TMP}, v{TMP+1}, s[{SRD_WS}:{SRD_WS+3}], s47 offen sc1")
    a("s_mov_b64 exec, -1")
    a.label(f"L_{name}_noep")
    if 'p3st' in OPT: a.stamp(3)
    a.dump_stamps(12, SRD_WS)
    a.label(f"L_{name}_end")
    a("s_endpgm")
    a.label(f"L_{name}_slow")
    M = TMP
    sb = S[0]
    a(f"v_mov_b32 v{M}, 0xff800000")
    a(f"s_add_u32 s46, s45, 0x{WS_K:x}")
    a("s_mov_b32 s40, 64")
    a.label(f"L_{name}_s1")
    a(f"buffer_load_dwordx4 v[{KF}:{KF+3}], v{VL16}, s[{SRD_WS}:{SRD_WS+3}], s46 offen sc1")
    a("s_waitcnt vmcnt(0)")
    a(f"v_mfma_f32_32x32x16_bf16 v[{sb}:{sb+15}], v[{KF}:{KF+3}], v[{Q}:{Q+3}], 0")
    a("s_nop 15")
    for i in range(8):
        a(f"v_max3_f32 v{M}, v{sb+2*i}, v{sb+2*i+1}, v{M}")
    a("s_add_u32 s46, s46, 1024")
    a("s_sub_u32 s40, s40, 1")
    a("s_cmp_lg_u32 s40, 0")
    a(f"s_cbranch_scc1 L_{name}_s1")
    a(f"v_mov_b32 v{M+2}, v{M}")
    a("s_nop 1")
    a(f"v_permlane32_swap_b32 v{M}, v{M+2}")
    a("s_nop 1")
    a(f"v_max_f32 v{M}, v{M}, v{M+2}")
    for r in range(16): a(f"v_mov_b32 v{O+r}, 0")
    a(f"s_add_u32 s46, s45, 0x{WS_K:x}")
    a(f"s_add_u32 s47, s45, 0x{WS_V:x}")
    a("s_mov_b32 s40, 64")
    a.label(f"L_{name}_s2")
    a(f"buffer_load_dwordx4 v[{KF}:{KF+3}], v{VL16}, s[{SRD_WS}:{SRD_WS+3}], s46 offen sc1")
    a("s_mov_b64 exec, s[32:33]")
    a(f"buffer_load_dwordx4 v[{V0}:{V0+3}], v{VL16}, s[{SRD_WS}:{SRD_WS+3}], s47 offen sc1")
    a(f"buffer_load_dwordx4 v[{V1}:{V1+3}], v{VL16}, s[{SRD_WS}:{SRD_WS+3}], s47 offen offset:256 sc1")
    a("s_mov_b64 exec, -1")
    a("s_waitcnt vmcnt(0)")
    a(f"v_mfma_f32_32x32x16_bf16 v[{sb}:{sb+15}], v[{KF}:{KF+3}], v[{Q}:{Q+3}], 0")
    a("s_nop 15")
    for i in range(16): a(f"v_sub_f32 v{sb+i}, v{sb+i}, v{M}")
    for i in range(16): a(f"v_exp_f32 v{sb+i}, v{sb+i}")
    a("s_nop 0")
    for i in range(8): a(f"v_cvt_pk_bf16_f32 v{P+i}, v{sb+2*i}, v{sb+2*i+1}")
    a("s_nop 1")
    a(f"v_mfma_f32_32x32x16_bf16 v[{O}:{O+15}], v[{V0}:{V0+3}], v[{P}:{P+3}], v[{O}:{O+15}]")
    a(f"v_mfma_f32_32x32x16_bf16 v[{O}:{O+15}], v[{V1}:{V1+3}], v[{P+4}:{P+7}], v[{O}:{O+15}]")
    a("s_add_u32 s46, s46, 1024")
    a("s_add_u32 s47, s47, 1024")
    a("s_sub_u32 s40, s40, 1")
    a("s_cmp_lg_u32 s40, 0")
    a(f"s_cbranch_scc1 L_{name}_s2")
    a("s_nop 15")
    a(f"s_branch L_{name}_fin")
    a.label(f"L_{name}_codeend")
    kd = f"""
.amdhsa_kernel {name}
  .amdhsa_next_free_vgpr 256
  .amdhsa_next_free_sgpr 100
  .amdhsa_accum_offset 256
  .amdhsa_group_segment_fixed_size 0
  .amdhsa_kernarg_size 96
  .amdhsa_user_sgpr_count 2
  .amdhsa_user_sgpr_kernarg_segment_ptr 1
  .amdhsa_system_sgpr_workgroup_id_x 1
.end_amdhsa_kernel
"""
    return a.text(), kd
```

```python
from asmlib import *

WS_Q = 0x000000
WS_K = 0x200000
WS_V = 0x400000
WS_O = 0x600000
WS_H = 0x800000
WS_G = 0xE00000
WS_B = 0x1000000
WS_SIZE = 0x1400000
QSCALE = 0.25 * 1.4426950408889634

def f32hex(x):
    import struct
    return "0x%08x" % struct.unpack("<I", struct.pack("<f", x))[0]

def srd(a, d, base, nbytes):
    a(f"s_mov_b32 s{d}, s{base}")
    a(f"s_mov_b32 s{d+1}, s{base+1}")
    if isinstance(nbytes, str):
        a(f"s_mov_b32 s{d+2}, {nbytes}")
    else:
        a(f"s_mov_b32 s{d+2}, 0x{nbytes:x}")
    a(f"s_mov_b32 s{d+3}, 0x20000")

STAGE = 40960
NSLOT = 4

def gen_k1(name, stamps=False):
    a = Asm(); a.stamps = stamps
    SRD_X, SRD_W, SRD_WS, SRD_B1 = 12, 16, 20, 24
    a.raw(f".globl {name}\n.p2align 8\n.type {name},@function\n{name}:")
    a(f"s_cmp_ge_u32 s2, 256")
    a(f"s_cbranch_scc1 L_{name}_end")
    a.rstamp(12)
    a.stamp(0)
    a("s_load_dwordx4 s[36:39], s[0:1], 0")
    a("s_load_dwordx2 s[42:43], s[0:1], 32")
    a("s_load_dwordx2 s[10:11], s[0:1], 40")
    a("s_load_dwordx2 s[8:9], s[0:1], 88")
    a("v_lshrrev_b32 v1, 6, v0")
    a("v_and_b32 v0, 63, v0")
    a("v_readfirstlane_b32 s3, v1")
    a("s_lshr_b32 s28, s2, 2")
    a("s_and_b32 s28, s28, 1")
    a("s_lshr_b32 s35, s2, 3")
    a("s_and_b32 s29, s2, 1")
    a("s_lshl_b32 s29, s29, 3")
    a("s_and_b32 s44, s35, 7")
    a("s_add_u32 s29, s29, s44")
    a("s_lshr_b32 s30, s2, 1")
    a("s_and_b32 s30, s30, 1")
    a("s_lshl_b32 s30, s30, 2")
    a("s_lshr_b32 s44, s35, 3")
    a("s_add_u32 s30, s30, s44")
    a("s_cmp_eq_u32 s28, 0")
    a("s_movk_i32 s31, 2752")
    a("s_cselect_b32 s31, 3072, s31")
    a("s_movk_i32 s32, 192")
    a("s_cselect_b32 s32, 64, s32")
    a("s_cselect_b32 s33, 1024, 64")
    a("s_movk_i32 s44, 384")
    a("s_cselect_b32 s44, 128, s44")
    a("s_mul_i32 s34, s30, s44")
    a("s_mov_b32 s45, 0x158000")
    a("s_cselect_b32 s45, 0x180000, s45")
    a("s_waitcnt lgkmcnt(0)")
    a("s_cmp_eq_u32 s28, 0")
    a("s_mov_b64 s[4:5], s[36:37]")
    a("s_cselect_b64 s[6:7], s[38:39], s[42:43]")
    srd(a, SRD_X, 4, 0x200000)
    srd(a, SRD_W, 6, "s45")
    srd(a, SRD_WS, 8, WS_SIZE)
    srd(a, SRD_B1, 10, 2752)
    a("s_cmp_ge_u32 s3, 4")
    a(f"s_cbranch_scc0 L_{name}_compute")
    a.c("loader waves")
    a("s_sub_u32 s36, s3, 4")
    a("v_lshrrev_b32 v2, 3, v0")
    a("v_and_b32 v3, 7, v0")
    a("v_lshrrev_b32 v4, 4, v0")
    a("s_and_b32 s37, s36, 1")
    a("s_lshl_b32 s38, s37, 2")
    a("v_add_u32 v4, s38, v4")
    a("v_xor_b32 v3, v3, v4")
    a("v_lshlrev_b32 v2, 10, v2")
    a("v_lshlrev_b32 v3, 4, v3")
    a("v_add_u32 v10, v2, v3")
    for m in range(3):
        a(f"v_add_u32 v2, {64*m}, v0")
        a(f"v_mul_u32_u24 v3, 0xaaab, v2")
        a(f"v_lshrrev_b32 v3, 19, v3")
        a(f"v_mul_u32_u24 v4, 12, v3")
        a(f"v_sub_u32 v4, v2, v4")
        a(f"v_lshrrev_b32 v5, 2, v4")
        a(f"v_and_b32 v4, 3, v4")
        a(f"v_mul_u32_u24 v3, s31, v3")
        a(f"v_mul_u32_u24 v5, s33, v5")
        a(f"v_lshlrev_b32 v4, 4, v4")
        a(f"v_add3_u32 v{11+m}, v3, v4, v5")
    a("s_lshl_b32 s40, s29, 17")
    a("s_lshl_b32 s41, s36, 13")
    a("s_add_u32 s40, s40, s41")
    a("s_lshl_b32 s41, s37, 5")
    a("s_mul_i32 s41, s41, s31")
    a("s_add_u32 s41, s41, s34")
    a("s_lshr_b32 s42, s36, 1")
    a("s_mul_i32 s42, s42, s32")
    a("s_add_u32 s41, s41, s42")
    a("s_lshl_b32 s43, s31, 4")
    a("s_lshl_b32 s44, s31, 6")
    a("s_lshl_b32 s45, s36, 10")
    a("s_mul_i32 s46, s36, 6144")
    a("s_add_u32 s46, s46, 16384")
    def issue(kc):
        slot = kc % NSLOT
        for m in range(4):
            a(f"s_add_u32 m0, s45, {slot*STAGE + m*4096}")
            a(f"s_add_u32 s47, s40, {kc*128 + m*32768}")
            a.vmem(f"buffer_load_dwordx4 v10, s[{SRD_X}:{SRD_X+3}], s47 offen lds", ("st", kc))
        a("s_add_u32 s48, s41, s43")
        for m in range(6):
            a(f"s_add_u32 m0, s46, {slot*STAGE + m*1024}")
            a("s_nop 0")
            a.vmem(f"buffer_load_dwordx4 v{11+m%3}, s[{SRD_W}:{SRD_W+3}], {'s41' if m < 3 else 's48'} offen lds", ("st", kc))
        a("s_add_u32 s41, s41, s44")
    a.stamp(1)
    for kc in range(4): issue(kc)
    a.stamp(2)
    for st in range(8):
        a.wait_vm(("st", st))
        a.stamp(3 + st)
        a("s_barrier")
        if st >= 1 and st + 3 <= 7: issue(st + 3)
    a.stamp(11)
    a.dump_stamps(12, SRD_WS)
    a("s_endpgm")
    a.label(f"L_{name}_compute")
    ACC = 64
    XF = [16, 36]
    XA = 4
    WL = 12
    a("s_and_b32 s36, s3, 1")
    a("s_lshr_b32 s37, s3, 1")
    a("v_and_b32 v1, 31, v0")
    a("s_lshl_b32 s38, s36, 6")
    a("v_add_u32 v1, s38, v1")
    a("v_lshlrev_b32 v1, 7, v1")
    a("v_lshrrev_b32 v2, 5, v0")
    a("v_lshrrev_b32 v3, 1, v0")
    a("v_and_b32 v3, 7, v3")
    a("v_xor_b32 v3, v3, v2")
    a("v_lshlrev_b32 v3, 4, v3")
    a(f"v_add_u32 v{XA}, v1, v3")
    for s_ in range(1, 4):
        a(f"v_xor_b32 v{XA+s_}, {s_<<5}, v{XA}")
    for s_ in range(4):
        a(f"v_add_u32 v{XA+4+s_}, {2*STAGE}, v{XA+s_}")
    a("v_lshlrev_b32 v1, 3, v2")
    a("v_and_b32 v3, 15, v0")
    a("v_lshrrev_b32 v3, 2, v3")
    a("v_add_u32 v1, v1, v3")
    a("v_mul_u32_u24 v1, 192, v1")
    a("v_lshrrev_b32 v3, 4, v0")
    a("v_and_b32 v3, 1, v3")
    a("v_lshlrev_b32 v3, 5, v3")
    a("v_add_u32 v1, v1, v3")
    a("v_and_b32 v3, 3, v0")
    a("v_lshlrev_b32 v3, 3, v3")
    a("v_add_u32 v1, v1, v3")
    a("s_mul_i32 s38, s37, 12288")
    a("s_add_u32 s38, s38, 16384")
    a(f"v_add_u32 v{WL}, s38, v1")
    a(f"v_add_u32 v{WL+1}, {2*STAGE}, v{WL}")
    a("s_cmp_eq_u32 s28, 0")
    a(f"s_cbranch_scc0 L_{name}_ffn1")

    def reads(n):
        st, s_ = n >> 2, n & 3
        slot = st % NSLOT
        setB = slot >= 2
        so = (slot & 1) * STAGE
        buf = XF[n & 1]
        out = []
        for tb in range(2):
            out.append(f"ds_read_b128 v[{buf+4*tb}:{buf+4*tb+3}], v{XA + (4 if setB else 0) + s_} offset:{so + 4096*tb}")
        for b in range(3):
            for t in range(2):
                r = buf + 8 + 4*b + 2*t
                out.append(f"ds_read_b64_tr_b16 v[{r}:{r+1}], v{WL + (1 if setB else 0)} offset:{so + (16*s_ + 4*t)*192 + b*64}")
        return out

    def mainloop(role, zero_c):
        a.stamp(1)
        a("s_barrier")
        a.stamp(2)
        for r in reads(0): a.lds(r, "fr")
        for n in range(32):
            st, s_ = n >> 2, n & 3
            a.wait_lg()
            if s_ == 3 and st < 7:
                a("s_barrier")
                a.stamp(3 + st)
            rd = reads(n + 1) if n < 31 else []
            buf = XF[n & 1]
            k = 0
            idx = 0
            for tb in range(2):
                for b in range(3):
                    acc = ACC + (tb*3 + b)*16
                    xf = f"v[{buf+4*tb}:{buf+4*tb+3}]"
                    wf = f"v[{buf+8+4*b}:{buf+8+4*b+3}]"
                    C = "0" if (n == 0 and zero_c) else f"v[{acc}:{acc+15}]"
                    if role == 0 and b == 2:
                        a(f"v_mfma_f32_32x32x16_bf16 v[{acc}:{acc+15}], {xf}, {wf}, {C}")
                    else:
                        a(f"v_mfma_f32_32x32x16_bf16 v[{acc}:{acc+15}], {wf}, {xf}, {C}")
                    idx += 1
                    cnt = {1: 3, 2: 3, 3: 2}.get(idx, 0)
                    for _ in range(cnt):
                        if k < len(rd):
                            a.lds(rd[k], "fr"); k += 1
        a("s_nop 15")
        a.stamp(10)

    mainloop(0, True)
    a.c("QKV epilogue")
    a("s_lshl_b32 s38, s30, 1")
    a("s_add_u32 s38, s38, s37")
    a("s_lshl_b32 s38, s38, 17")
    a("s_lshl_b32 s39, s29, 2")
    a("s_lshl_b32 s40, s36, 1")
    a("s_add_u32 s39, s39, s40")
    a("s_lshl_b32 s39, s39, 10")
    a("s_add_u32 s38, s38, s39")
    a("v_lshlrev_b32 v1, 4, v0")
    a("v_and_b32 v2, 15, v0")
    a("v_lshlrev_b32 v2, 4, v2")
    a("v_lshrrev_b32 v3, 5, v0")
    a("v_lshlrev_b32 v3, 9, v3")
    a("v_add_u32 v2, v2, v3")
    a("v_lshrrev_b32 v3, 4, v0")
    a("v_and_b32 v3, 1, v3")
    a("v_lshlrev_b32 v3, 16, v3")
    a("v_add_u32 v2, v2, v3")
    a(f"s_mov_b32 s41, {f32hex(QSCALE)}")
    PK = 16
    pk = 0
    for tb in range(2):
        for b in range(3):
            acc = ACC + (tb*3 + b)*16
            if b == 0:
                for r in range(16):
                    a(f"v_mul_f32 v{acc+r}, s41, v{acc+r}")
            for half in range(2):
                d = PK + 4*(pk % 8); pk += 1
                for q in range(4):
                    a(f"v_cvt_pk_bf16_f32 v{d+q}, v{acc+8*half+2*q}, v{acc+8*half+2*q+1}")
                if b < 2:
                    off = (WS_Q if b == 0 else WS_K) + half*65536 + tb*1024
                    a(f"s_add_u32 s42, s38, 0x{off:x}")
                    a.vmem(f"buffer_store_dwordx4 v[{d}:{d+3}], v1, s[{SRD_WS}:{SRD_WS+3}], s42 offen")
                else:
                    off = WS_V + tb*1024 + half*256
                    a(f"s_add_u32 s42, s38, 0x{off:x}")
                    a.vmem(f"buffer_store_dwordx4 v[{d}:{d+3}], v2, s[{SRD_WS}:{SRD_WS+3}], s42 offen")
    a("s_waitcnt vmcnt(0)") if stamps else None
    a.stamp(11)
    a.dump_stamps(12, SRD_WS)
    a("s_endpgm")

    a.label(f"L_{name}_ffn1")
    a.vm = []; a.lg = []
    a("s_mul_i32 s38, s30, 192")
    a("s_mul_i32 s39, s37, 96")
    a("s_add_u32 s38, s38, s39")
    a("v_lshrrev_b32 v1, 5, v0")
    a("v_lshlrev_b32 v1, 3, v1")
    a("s_lshl_b32 s39, s38, 1")
    for b in range(3):
        for q in range(4):
            r = 16 + (b*4 + q)*2
            a.vmem(f"buffer_load_dwordx2 v[{r}:{r+1}], v1, s[{SRD_B1}:{SRD_B1+3}], s39 offen offset:{b*64 + q*16}", "b1")
    a.wait_vm()
    for b in range(3):
        for q in range(4):
            r = 16 + (b*4 + q)*2
            acc = ACC + b*16 + 4*q
            a(f"v_lshlrev_b32 v{acc}, 16, v{r}")
            a(f"v_and_b32 v{acc+1}, 0xffff0000, v{r}")
            a(f"v_lshlrev_b32 v{acc+2}, 16, v{r+1}")
            a(f"v_and_b32 v{acc+3}, 0xffff0000, v{r+1}")
    for r in range(48):
        a(f"v_mov_b32 v{ACC+48+r}, v{ACC+r}")
    mainloop(1, False)
    a.c("FFN1 epilogue")
    a("s_lshl_b32 s39, s29, 2")
    a("s_lshl_b32 s40, s36, 1")
    a("s_add_u32 s39, s39, s40")
    a(f"s_mul_i32 s39, s39, {86*1024}")
    a("s_lshl_b32 s40, s38, 6")
    a("s_add_u32 s39, s39, s40")
    a("v_lshlrev_b32 v1, 4, v0")
    PK = 16
    pk = 0
    for b in range(3):
        a(f"s_add_u32 s41, s38, {32*b}")
        a("s_cmp_ge_u32 s41, 1376")
        a(f"s_cbranch_scc1 L_{name}_end")
        for tb in range(2):
            acc = ACC + (tb*3 + b)*16
            for r in range(16):
                a(f"v_max_f32 v{acc+r}, 0, v{acc+r}")
            for r in range(16):
                a(f"v_mul_f32 v{acc+r}, v{acc+r}, v{acc+r}")
            for half in range(2):
                d = PK + 4*(pk % 8); pk += 1
                for q in range(4):
                    a(f"v_cvt_pk_bf16_f32 v{d+q}, v{acc+8*half+2*q}, v{acc+8*half+2*q+1}")
                off = WS_H + tb*86*1024 + (2*b + half)*1024
                a(f"s_add_u32 s42, s39, 0x{off:x}")
                a.vmem(f"buffer_store_dwordx4 v[{d}:{d+3}], v1, s[{SRD_WS}:{SRD_WS+3}], s42 offen")
    a.label(f"L_{name}_end")
    a("s_endpgm")
    kd = f"""
.amdhsa_kernel {name}
  .amdhsa_next_free_vgpr 160
  .amdhsa_next_free_sgpr 100
  .amdhsa_accum_offset 160
  .amdhsa_group_segment_fixed_size 0
  .amdhsa_kernarg_size 96
  .amdhsa_user_sgpr_count 2
  .amdhsa_user_sgpr_kernarg_segment_ptr 1
  .amdhsa_system_sgpr_workgroup_id_x 1
.end_amdhsa_kernel
"""
    return a.text(), kd
```

```python
from asmlib import *
from k1 import WS_Q, WS_K, WS_V, WS_O, WS_H, WS_G, WS_B, WS_SIZE, QSCALE, srd, f32hex

WS_FLAG = 0xE40000
FQ = WS_FLAG
FH = WS_FLAG + 0x3000
FO = WS_FLAG + 0x4000
EPOCH = WS_FLAG + 0x6000

import os
DBG = os.environ.get('DBG') == '1'
DBG2 = os.environ.get('DBG2') == '1'
PREFETCH = os.environ.get('PF') == '1'
SLOT = 28672
PUBBAR = int(os.environ.get('PUBBAR', '11'))
LSTORE = os.environ.get('LSTORE') == '1'
GWL = 155648
NSLOT = 5
SRD_X, SRD_WQ, SRD_WS, SRD_B1, SRD_W1, SRD_GW = 12, 16, 20, 24, 28, 32
S_TAG = 36
S_RT, S_C, S_ROT = 37, 38, 39

def prologue_common(a, name):
    a("s_load_dwordx4 s[4:7], s[0:1], 0")
    a("s_load_dwordx4 s[40:43], s[0:1], 32")
    a("s_load_dwordx2 s[44:45], s[0:1], 64")
    a("s_load_dwordx2 s[8:9], s[0:1], 88")
    a("v_lshrrev_b32 v1, 6, v0")
    a("v_and_b32 v0, 63, v0")
    a("v_readfirstlane_b32 s3, v1")
    a("s_lshr_b32 s46, s2, 3")
    a("s_and_b32 s47, s2, 1")
    a("s_lshl_b32 s47, s47, 3")
    a("s_and_b32 s48, s46, 7")
    a(f"s_add_u32 s{S_RT}, s47, s48")
    a("s_lshr_b32 s47, s2, 1")
    a("s_and_b32 s47, s47, 3")
    a("s_lshl_b32 s47, s47, 2")
    a("s_lshr_b32 s49, s46, 3")
    a(f"s_add_u32 s{S_C}, s47, s49")
    a("s_lshl_b32 s49, s49, 1")
    a("s_add_u32 s49, s49, s48")
    ROT = int(os.environ.get('ROT', '0'))
    if ROT == 0:
        a(f"s_mov_b32 s{S_ROT}, 0")
    elif ROT == 9:
        a(f"s_and_b32 s{S_ROT}, s49, 7")
    else:
        a(f"s_add_u32 s49, s{S_C}, s{S_RT}")
        a(f"s_and_b32 s49, s49, {8//ROT - 1}")
        a(f"s_mul_i32 s{S_ROT}, s49, {ROT}")

def prologue_srds(a):
    a("s_waitcnt lgkmcnt(0)")
    srd(a, SRD_X, 4, 0x200000)
    srd(a, SRD_WQ, 6, 0x180000)
    srd(a, SRD_WS, 8, WS_SIZE)
    srd(a, SRD_W1, 40, 0x158000)
    srd(a, SRD_B1, 42, 2752)
    srd(a, SRD_GW, 44, 1024)

def load_tag(a, vtmp, stmp=46):
    a(f"v_mov_b32 v{vtmp}, 0")
    a(f"s_mov_b32 s{stmp}, 0x{EPOCH:x}")
    a(f"buffer_load_dword v{vtmp}, v{vtmp}, s[{SRD_WS}:{SRD_WS+3}], s{stmp} offen sc1")

def finish_tag(a, vtmp):
    a(f"v_add_u32 v{vtmp}, 1, v{vtmp}")
    a("s_nop 0")
    a(f"v_readfirstlane_b32 s{S_TAG}, v{vtmp}")

def publish(a, soff_reg, vtmp, n=1, stride=256):
    a("s_waitcnt vmcnt(0)")
    a(f"v_mov_b32 v{vtmp}, s{S_TAG}")
    a(f"v_mul_u32_u24 v{vtmp+1}, {stride}, v0")
    a(f"s_mov_b64 exec, {(1 << n) - 1}")
    a(f"buffer_store_dword v{vtmp}, v{vtmp+1}, s[{SRD_WS}:{SRD_WS+3}], s{soff_reg} offen sc1")
    a("s_mov_b64 exec, -1")

def gen_phase1(a, name, end_label, SC="sc1", loader_tail=None, defer_h=False, compute_head=None, compute_post=None):
    a("s_cmp_ge_u32 s3, 4")
    a(f"s_cbranch_scc0 L_{name}_compute")
    a.c("loader waves")
    a("s_sub_u32 s50, s3, 4")
    a("v_lshrrev_b32 v2, 3, v0")
    a("v_and_b32 v3, 7, v0")
    a("v_lshrrev_b32 v4, 4, v0")
    a("s_and_b32 s51, s50, 1")
    a("s_lshl_b32 s52, s51, 2")
    a("v_add_u32 v4, s52, v4")
    a("v_xor_b32 v3, v3, v4")
    a("v_lshlrev_b32 v2, 10, v2")
    a("v_lshlrev_b32 v3, 4, v3")
    a("v_add_u32 v10, v2, v3")
    a("s_movk_i32 s53, 3072")
    a("s_movk_i32 s54, 2752")
    for m in range(3):
        a(f"v_add_u32 v2, {64*m}, v0")
        a(f"v_mul_u32_u24 v3, 0xaaab, v2")
        a(f"v_lshrrev_b32 v3, 19, v3")
        a(f"v_mul_u32_u24 v4, 12, v3")
        a(f"v_sub_u32 v4, v2, v4")
        a(f"v_lshlrev_b32 v4, 4, v4")
        a(f"v_mul_u32_u24 v7, s53, v3")
        a(f"v_add_u32 v{11+m}, v7, v4")
        a(f"v_mul_u32_u24 v7, s54, v3")
        a(f"v_add_u32 v{14+m}, v7, v4")
    a(f"s_lshl_b32 s55, s{S_RT}, 17")
    a("s_lshl_b32 s56, s50, 13")
    a("s_add_u32 s55, s55, s56")
    a("s_lshl_b32 s56, s50, 4")
    a("s_mul_i32 s57, s56, 3072")
    a(f"s_mul_i32 s58, s{S_C}, 192")
    a("s_add_u32 s57, s57, s58")
    a("s_mul_i32 s58, s56, 2752")
    a(f"s_mul_i32 s59, s{S_C}, 192")
    a("s_add_u32 s58, s58, s59")
    a("s_lshl_b32 s59, s50, 10")
    a("s_mul_i32 s60, s50, 3072")
    a("s_add_u32 s60, s60, 16384")
    def issue(g):
        slot = g % NSLOT
        a(f"s_add_u32 s61, s{S_ROT}, {g % 8}")
        a("s_and_b32 s61, s61, 7")
        if g < 8:
            a("s_lshl_b32 s62, s61, 7")
            a("s_add_u32 s62, s62, s55")
            for m in range(4):
                a(f"s_add_u32 m0, s59, {slot*SLOT + m*4096}")
                a(f"s_add_u32 s63, s62, {m*32768}")
                a.vmem(f"buffer_load_dwordx4 v10, s[{SRD_X}:{SRD_X+3}], s63 offen lds", ("st", g))
            a(f"s_mul_i32 s63, s61, {64*3072}")
            a("s_add_u32 s63, s63, s57")
        else:
            a(f"s_mul_i32 s63, s61, {64*2752}")
            a("s_add_u32 s63, s63, s58")
        for m in range(3):
            a(f"s_add_u32 m0, s60, {slot*SLOT + m*1024}")
            a("s_nop 0")
            if g < 8:
                a.vmem(f"buffer_load_dwordx4 v{11+m}, s[{SRD_WQ}:{SRD_WQ+3}], s63 offen lds", ("st", g))
            else:
                a.vmem(f"buffer_load_dwordx4 v{14+m}, s[{SRD_W1}:{SRD_W1+3}], s63 offen lds", ("st", g))
    a("v_lshlrev_b32 v17, 4, v0")
    a("v_and_b32 v2, 15, v0")
    a("v_lshlrev_b32 v2, 4, v2")
    a("v_lshrrev_b32 v3, 5, v0")
    a("v_lshlrev_b32 v3, 9, v3")
    a("v_add_u32 v2, v2, v3")
    a("v_lshrrev_b32 v3, 4, v0")
    a("v_and_b32 v3, 1, v3")
    a("v_lshlrev_b32 v3, 16, v3")
    a("v_add_u32 v18, v2, v3")
    a("s_and_b32 s46, s50, 1")
    a("s_mul_i32 s46, s46, 6144")
    a("s_lshr_b32 s47, s50, 1")
    a("s_mul_i32 s47, s47, 28672")
    a("s_add_u32 s46, s46, s47")
    a("v_add_u32 v19, s46, v17")
    prologue_srds(a)
    load_tag(a, 228)
    a.stamp(1)
    a("v_lshlrev_b32 v2, 4, v0")
    a(f"s_mov_b32 m0, {GWL}")
    a("s_nop 0")
    a.vmem(f"buffer_load_dwordx4 v2, s[{SRD_GW}:{SRD_GW+3}], 0 offen lds", ("st", 0))
    issue(0)
    issue(1)
    def l2_prefetch_setup():
        a("s_lshr_b32 s61, s2, 3")
        a("v_and_b32 v2, 31, v0")
        a("v_lshlrev_b32 v20, 10, v2")
        a("s_and_b32 s62, s2, 1")
        a("s_lshl_b32 s62, s62, 20")
        a("s_lshl_b32 s63, s61, 15")
        a("s_add_u32 s46, s62, s63")
        a("v_lshrrev_b32 v2, 3, v0")
        a("v_and_b32 v2, 1, v2")
        a("s_lshl_b32 s62, s61, 1")
        a("v_add_u32 v2, s62, v2")
        a("v_and_b32 v3, 7, v0")
        a("v_min_u32 v4, 5, v3")
        a("v_lshlrev_b32 v4, 7, v4")
        a("v_mul_u32_u24 v5, s53, v2")
        a("v_add_u32 v21, v5, v4")
        a("s_lshr_b32 s62, s2, 1")
        a("s_and_b32 s62, s62, 3")
        a("s_mul_i32 s47, s62, 768")
        a("v_lshrrev_b32 v5, 4, v0")
        a("v_lshlrev_b32 v5, 6, v5")
        a("v_add_u32 v5, v5, v2")
        a("v_mul_u32_u24 v5, s54, v5")
        a("v_min_u32 v4, 6, v3")
        a("v_lshlrev_b32 v4, 7, v4")
        a("v_add_u32 v22, v5, v4")
    def l2_prefetch(round_):
        a(f"s_add_u32 s62, s50, {2 + 4*round_}")
        a("s_min_u32 s62, s62, 7")
        a("s_lshl_b32 s63, s62, 7")
        a("s_add_u32 s63, s63, s46")
        a("s_mov_b32 exec_hi, 0")
        a.vmem(f"buffer_load_dword v250, v20, s[{SRD_X}:{SRD_X+3}], s63 offen", "pf")
        a("s_mov_b32 exec_lo, 0xffff")
        a(f"s_mul_i32 s63, s62, {64*3072}")
        a("s_add_u32 s63, s63, s47")
        a.vmem(f"buffer_load_dword v251, v21, s[{SRD_WQ}:{SRD_WQ+3}], s63 offen", "pf")
        a("s_mov_b64 exec, -1")
    def l2_prefetch_w1():
        a("s_cmp_ge_u32 s50, 2")
        a(f"s_cbranch_scc1 L_{name}_now1pf")
        a("s_and_b32 s62, s50, 1")
        a(f"s_mul_i32 s63, s62, {256*2752}")
        a("s_add_u32 s63, s63, s47")
        a(f"buffer_load_dword v252, v22, s[{SRD_W1}:{SRD_W1+3}], s63 offen")
        a.label(f"L_{name}_now1pf")
    W1PF = int(os.environ.get('W1PF', '-1'))
    if PREFETCH or W1PF >= 0:
        l2_prefetch_setup()
    if PREFETCH:
        l2_prefetch(0)
        l2_prefetch(1)
    for g in range(16):
        if DBG and g == 12: a.stamp(7)
        a.wait_vm(("st", g))
        if g in (0, 1, 7, 8, 15): a.stamp({0: 2, 1: 3, 7: 4, 8: 5, 15: 6}[g])
        if DBG and g == 12: a.stamp(8)
        if g == 0: finish_tag(a, 228)
        if g == PUBBAR and LSTORE: a.wait_vm("qst")
        a("s_barrier")
        if DBG and g == 12: a.stamp(9)
        if g == PUBBAR:
            a("s_cmp_lg_u32 s50, 1")
            a(f"s_cbranch_scc1 L_{name}_nopub")
            a(f"s_mul_i32 s62, s{S_C}, 3")
            a("v_add_u32 v2, s62, v0")
            a("v_lshrrev_b32 v3, 4, v2")
            a("v_lshlrev_b32 v3, 6, v3")
            a("v_and_b32 v2, 15, v2")
            a("v_lshlrev_b32 v2, 8, v2")
            a("v_add_u32 v2, v2, v3")
            a(f"s_lshl_b32 s62, s{S_RT}, 2")
            a(f"s_add_u32 s62, s62, 0x{FQ:x}")
            a(f"v_mov_b32 v3, s{S_TAG}")
            a("s_mov_b64 exec, 7")
            a(f"buffer_store_dword v3, v2, s[{SRD_WS}:{SRD_WS+3}], s62 offen sc1")
            a("s_mov_b64 exec, -1")
            a.label(f"L_{name}_nopub")
        if g == W1PF: l2_prefetch_w1()
        if g == 0:
            issue(2); issue(3); issue(4)
        elif g <= 8:
            issue(g + 4)
        elif g >= 10 and g + 3 <= 15:
            issue(g + 3)
        if g == 8 and LSTORE:
            for k in range(6):
                a(f"ds_read_b128 v[{24+4*k}:{27+4*k}], v19 offset:{k*1024}")
            a(f"s_lshl_b32 s62, s{S_RT}, 2")
            a("s_add_u32 s62, s62, s50")
            a("s_lshl_b32 s62, s62, 10")
            for b in range(3):
                a(f"s_mul_i32 s46, s{S_C}, 3")
                a(f"s_add_u32 s46, s46, {b}")
                a("s_lshr_b32 s47, s46, 4")
                a("s_lshl_b32 s47, s47, 21")
                a("s_and_b32 s48, s46, 15")
                a("s_lshl_b32 s48, s48, 17")
                a("s_add_u32 s47, s47, s48")
                a("s_add_u32 s47, s47, s62")
                a("s_cmp_ge_u32 s46, 32")
                a("s_cselect_b64 vcc, -1, 0")
                a("s_movk_i32 s48, 256")
                a("s_cselect_b32 s48, s48, 0x10000")
                a("s_add_u32 s48, s48, s47")
                a(f"v_cndmask_b32 v{20+b}, v17, v18, vcc")
                if b == 0: a("s_waitcnt lgkmcnt(0)")
                a.vmem(f"buffer_store_dwordx4 v[{24+8*b}:{27+8*b}], v{20+b}, s[{SRD_WS}:{SRD_WS+3}], s47 offen {SC}", "qst")
                a.vmem(f"buffer_store_dwordx4 v[{28+8*b}:{31+8*b}], v{20+b}, s[{SRD_WS}:{SRD_WS+3}], s48 offen {SC}", "qst")
    if loader_tail: loader_tail(a)
    a(f"s_branch {end_label}")
    a.label(f"L_{name}_compute")
    a.vm = []; a.lg = []
    if compute_head: compute_head(a)
    XR = 100
    ACC = 52
    WF = [16, 28, 40]
    XA = 4
    a("v_and_b32 v1, 31, v0")
    a("s_lshl_b32 s50, s3, 5")
    a("v_add_u32 v1, s50, v1")
    a("v_lshlrev_b32 v1, 7, v1")
    a("v_lshrrev_b32 v2, 5, v0")
    a("v_lshrrev_b32 v3, 1, v0")
    a("v_and_b32 v3, 7, v3")
    a("v_xor_b32 v3, v3, v2")
    a("v_lshlrev_b32 v3, 4, v3")
    a(f"v_add_u32 v{XA}, v1, v3")
    for s_ in range(1, 4):
        a(f"v_xor_b32 v{XA+s_}, {s_<<5}, v{XA}")
    for s_ in range(4):
        a(f"v_add_u32 v{XA+4+s_}, {2*SLOT}, v{XA+s_}")
    for s_ in range(4):
        a(f"v_add_u32 v{XA+8+s_}, {4*SLOT}, v{XA+s_}")
    WL = 229
    a("v_lshlrev_b32 v1, 3, v2")
    a("v_and_b32 v3, 15, v0")
    a("v_lshrrev_b32 v3, 2, v3")
    a("v_add_u32 v1, v1, v3")
    a("v_mul_u32_u24 v1, 192, v1")
    a("v_lshrrev_b32 v3, 4, v0")
    a("v_and_b32 v3, 1, v3")
    a("v_lshlrev_b32 v3, 5, v3")
    a("v_add_u32 v1, v1, v3")
    a("v_and_b32 v3, 3, v0")
    a("v_lshlrev_b32 v3, 3, v3")
    a("v_add_u32 v1, v1, v3")
    a(f"v_add_u32 v{WL}, 16384, v1")
    a(f"v_add_u32 v{WL+1}, {2*SLOT}, v{WL}")
    a(f"v_add_u32 v{WL+2}, {4*SLOT}, v{WL}")
    BI = 232
    a("s_and_b32 s46, s3, 1")
    a("s_mul_i32 s46, s46, 6144")
    a("s_lshr_b32 s47, s3, 1")
    a("s_mul_i32 s47, s47, 28672")
    a("s_add_u32 s46, s46, s47")
    a("v_lshlrev_b32 v3, 4, v0")
    a("v_add_u32 v228, s46, v3")
    for b in range(3):
        a(f"s_mul_i32 s46, s{S_C}, 3")
        a(f"s_add_u32 s46, s46, {b}")
        a("s_cmp_lt_u32 s46, 16")
        a(f"s_mov_b32 s{58+2*b}, 1.0")
        a(f"s_cselect_b32 s{58+2*b}, {f32hex(QSCALE)}, s{58+2*b}")
        a(f"s_mov_b32 s{59+2*b}, s{58+2*b}")
    if not LSTORE:
        a("v_lshlrev_b32 v228, 4, v0")
        for b in range(3):
            a(f"s_mul_i32 s46, s{S_C}, 3")
            a(f"s_add_u32 s46, s46, {b}")
            a("s_lshr_b32 s47, s46, 4")
            a("s_lshl_b32 s47, s47, 21")
            a("s_and_b32 s48, s46, 15")
            a("s_lshl_b32 s48, s48, 17")
            a("s_add_u32 s47, s47, s48")
            a(f"s_lshl_b32 s48, s{S_RT}, 2")
            a("s_add_u32 s48, s48, s3")
            a("s_lshl_b32 s48, s48, 10")
            a(f"s_add_u32 s{54+b}, s47, s48")
    prologue_srds(a)
    load_tag(a, 3)
    if compute_post: compute_post(a)
    a("v_lshlrev_b32 v1, 3, v2")
    a(f"s_mul_i32 s51, s{S_C}, 192")
    for b in range(3):
        for q in range(4):
            r = BI + (b*4 + q)*2
            a.vmem(f"buffer_load_dwordx2 v[{r}:{r+1}], v1, s[{SRD_B1}:{SRD_B1+3}], s51 offen offset:{b*64 + q*16}", "b1")
    if not DBG2: a.stamp(1)

    def reads(n):
        g, s_ = n >> 2, n & 3
        slot = g % NSLOT
        st = slot // 2
        so = (slot & 1) * SLOT
        buf = WF[n % 3]
        out = []
        if g < 8:
            r = XR + 4*n
            out.append(f"ds_read_b128 v[{r}:{r+3}], v{XA + 4*st + s_} offset:{so}")
        for b in range(3):
            for t in range(2):
                r = buf + 4*b + 2*t
                out.append(f"ds_read_b64_tr_b16 v[{r}:{r+1}], v{WL + st} offset:{so + (16*s_ + 4*t)*192 + b*64}")
        return out

    def gemm(g0, vmask, first_c, hook=None, prehook=None):
        n0 = 4*g0
        a("s_barrier")
        if g0 == 0 and not DBG2: a.stamp(2)
        for r in reads(n0): a.lds(r, ("fr", n0))
        for r in reads(n0 + 1): a.lds(r, ("fr", n0 + 1))
        for n in range(n0, n0 + 32):
            g, s_ = n >> 2, n & 3
            if DBG2 and 40 <= n <= 48: a.rawstamp(n - 40 + 1)
            if DBG and n == 46: a.rawstamp(8)
            a.wait_lg(("fr", n))
            if DBG and n == 46: a.rawstamp(9)
            if s_ == 2 and n + 2 < n0 + 32:
                if g0 == 0: a.wait_lg()
                if prehook: prehook(n - n0)
                a("s_barrier")
            if DBG and n == 46: a.rawstamp(10)
            if DBG and n == 47: a.rawstamp(11)
            if hook: hook(n - n0)
            rd = reads(n + 2) if n + 2 < n0 + 32 else []
            buf = WF[n % 3]
            xr = XR + 4*(n % 32)
            k = 0
            for b in range(3):
                acc = ACC + b*16
                xf = f"v[{xr}:{xr+3}]"
                wf = f"v[{buf+4*b}:{buf+4*b+3}]"
                C = first_c(b) if n == n0 else f"v[{acc}:{acc+15}]"
                if (vmask >> b) & 1:
                    a(f"v_mfma_f32_32x32x16_bf16 v[{acc}:{acc+15}], {xf}, {wf}, {C}")
                else:
                    a(f"v_mfma_f32_32x32x16_bf16 v[{acc}:{acc+15}], {wf}, {xf}, {C}")
                cnt = {0: 3, 1: 2, 2: 2}[b]
                for _ in range(cnt):
                    if k < len(rd):
                        a.lds(rd[k], ("fr", n + 2)); k += 1
        a("s_nop 15")

    a(f"s_lshl_b32 s53, s{S_RT}, 2")
    a("s_add_u32 s53, s53, s3")
    def qkv_variant(vmask, lab_next):
        save_lg = list(a.lg)
        save_vm = list(a.vm)
        gemm(0, vmask, lambda b: "0")
        if not DBG2: a.stamp(3)
        a.c("QKV epilogue")
        if not LSTORE and vmask:
            a("v_and_b32 v2, 15, v0")
            a("v_lshlrev_b32 v2, 4, v2")
            a("v_lshrrev_b32 v1, 5, v0")
            a("v_lshlrev_b32 v1, 9, v1")
            a("v_add_u32 v2, v2, v1")
            a("v_lshrrev_b32 v1, 4, v0")
            a("v_and_b32 v1, 1, v1")
            a("v_lshlrev_b32 v1, 16, v1")
            a("v_add_u32 v2, v2, v1")
        for b in range(3):
            acc = ACC + b*16
            isv = (vmask >> b) & 1
            if not isv:
                for r in range(0, 16, 2):
                    a(f"v_pk_mul_f32 v[{acc+r}:{acc+r+1}], v[{acc+r}:{acc+r+1}], s[{58+2*b}:{59+2*b}]")
            for half in range(2):
                d = acc + 8*half
                for q in range(4):
                    a(f"v_cvt_pk_bf16_f32 v{d+q}, v{acc+8*half+2*q}, v{acc+8*half+2*q+1}")
                if LSTORE:
                    a(f"ds_write_b128 v228, v[{d}:{d+3}] offset:{(2*b + half)*1024}")
                else:
                    if half: a(f"s_add_u32 s46, s{54+b}, {256 if isv else 65536}")
                    a(f"buffer_store_dwordx4 v[{d}:{d+3}], {'v2' if isv else 'v228'}, s[{SRD_WS}:{SRD_WS+3}], {'s46' if half else f's{54+b}'} offen {SC}")
        if LSTORE: a("s_waitcnt lgkmcnt(0)")
        if lab_next: a(f"s_branch {lab_next}")
        a.vm = list(save_vm); a.lg = []
    a(f"s_cmp_ge_u32 s{S_C}, 11")
    a(f"s_cbranch_scc1 L_{name}_qv7")
    a(f"s_cmp_eq_u32 s{S_C}, 10")
    a(f"s_cbranch_scc1 L_{name}_qv4")
    qkv_variant(0, f"L_{name}_qdone")
    a.label(f"L_{name}_qv4")
    qkv_variant(4, f"L_{name}_qdone")
    a.label(f"L_{name}_qv7")
    qkv_variant(7, None)
    a.label(f"L_{name}_qdone")
    a("s_waitcnt vmcnt(%d)" % (0 if LSTORE else 6))
    a.vm = []
    finish_tag(a, 3)
    a("v_lshlrev_b32 v1, 4, v0")
    if not DBG2: a.stamp(4)
    a(f"s_cmp_eq_u32 s{S_C}, 15")
    a(f"s_cbranch_scc1 L_{name}_gate")
    a("s_nop 1")
    for b in range(3):
        for q in range(4):
            r = BI + (b*4 + q)*2
            acc = ACC + b*16 + 4*q
            a(f"v_lshlrev_b32 v{acc}, 16, v{r}")
            a(f"v_and_b32 v{acc+1}, 0xffff0000, v{r}")
            a(f"v_lshlrev_b32 v{acc+2}, 16, v{r+1}")
            a(f"v_and_b32 v{acc+3}, 0xffff0000, v{r+1}")
    PUB_AT = 4*(PUBBAR - 9) + 2
    def prehook(n):
        if n == PUB_AT and not LSTORE:
            a("s_waitcnt vmcnt(0)")
    gemm(8, 0, lambda b: f"v[{ACC+16*b}:{ACC+16*b+15}]", None, prehook)
    if not DBG2: a.stamp(5)
    a.c("FFN1 epilogue")
    a(f"s_mul_i32 s54, s53, {86*1024}")
    a(f"s_mul_i32 s55, s{S_C}, {6*1024}")
    a("s_add_u32 s54, s54, s55")
    a(f"s_mul_i32 s55, s{S_C}, 3")
    for b in range(3):
        a(f"s_add_u32 s56, s55, {b}")
        a("s_cmp_ge_u32 s56, 43")
        a(f"s_cbranch_scc1 L_{name}_hdone")
        acc = ACC + b*16
        for r in range(16):
            a(f"v_max_f32 v{acc+r}, 0, v{acc+r}")
        for r in range(0, 16, 2):
            a(f"v_pk_mul_f32 v[{acc+r}:{acc+r+1}], v[{acc+r}:{acc+r+1}], v[{acc+r}:{acc+r+1}]")
        for half in range(2):
            d = acc + 8*half
            for q in range(4):
                a(f"v_cvt_pk_bf16_f32 v{d+q}, v{acc+8*half+2*q}, v{acc+8*half+2*q+1}")
            off = WS_H + (2*b + half)*1024
            a(f"s_add_u32 s56, s54, 0x{off:x}")
            a.vmem(f"buffer_store_dwordx4 v[{d}:{d+3}], v1, s[{SRD_WS}:{SRD_WS+3}], s56 offen {SC}")
    a(f"s_branch L_{name}_hdone")
    a.label(f"L_{name}_gate")
    save_vm = list(a.vm)
    a("v_lshrrev_b32 v3, 5, v0")
    a("v_lshlrev_b32 v3, 4, v3")
    GF = 16
    for g in range(8):
        a(f"s_add_u32 s61, s{S_ROT}, {g}")
        a("s_and_b32 s61, s61, 7")
        a("s_lshl_b32 s61, s61, 7")
        a(f"s_add_u32 s61, s61, {GWL}")
        a("v_add_u32 v4, s61, v3")
        for s_ in range(4):
            a(f"ds_read_b128 v[{GF+4*s_}:{GF+4*s_+3}], v4 offset:{32*s_}")
        a("s_waitcnt lgkmcnt(0)")
        for s_ in range(4):
            xr = XR + 4*(4*g + s_)
            C = "0" if (g == 0 and s_ == 0) else f"v[{ACC}:{ACC+15}]"
            a(f"v_mfma_f32_32x32x16_bf16 v[{ACC}:{ACC+15}], v[{GF+4*s_}:{GF+4*s_+3}], v[{xr}:{xr+3}], {C}")
        if 8 + g == PUBBAR and not LSTORE: a("s_waitcnt vmcnt(0)")
        a("s_barrier")
    a("s_nop 15")
    a(f"v_mul_f32 v{ACC}, {f32hex(-1.4426950408889634)}, v{ACC}")
    a(f"v_exp_f32 v{ACC}, v{ACC}")
    a("s_nop 0")
    a(f"v_add_f32 v{ACC}, 1.0, v{ACC}")
    a(f"v_rcp_f32 v{ACC}, v{ACC}")
    a("v_and_b32 v3, 31, v0")
    a("v_lshlrev_b32 v3, 2, v3")
    a("s_lshl_b32 s56, s53, 7")
    a(f"s_add_u32 s56, s56, 0x{WS_G:x}")
    a("s_mov_b32 exec_hi, 0")
    a(f"buffer_store_dword v{ACC}, v3, s[{SRD_WS}:{SRD_WS+3}], s56 offen {SC}")
    a("s_mov_b64 exec, -1")
    a.label(f"L_{name}_hdone")
    a("s_lshl_b32 s57, s53, 6")
    a(f"s_lshl_b32 s58, s{S_C}, 2")
    a("s_add_u32 s57, s57, s58")
    a(f"s_add_u32 s57, s57, 0x{FH:x}")
    if not DBG2: a.stamp(6)
    if defer_h:
        a("s_mov_b32 s34, s57")
    else:
        publish(a, 57, 2)
        a.vm = []
        a.stamp(7)
        a(f"s_branch {end_label}")

def gen_k1b(name, stamps=False):
    a = Asm(); a.stamps = stamps
    a.raw(f".globl {name}\n.p2align 8\n.type {name},@function\n{name}:")
    a("s_cmp_ge_u32 s2, 256")
    a(f"s_cbranch_scc1 L_{name}_end")
    a.rstamp(12); a.stamp(0)
    prologue_common(a, name)
    gen_phase1(a, name, f"L_{name}_p1done")
    a.label(f"L_{name}_p1done")
    a.dump_stamps(12, SRD_WS)
    a.label(f"L_{name}_end")
    a("s_endpgm")
    kd = f"""
.amdhsa_kernel {name}
  .amdhsa_next_free_vgpr 256
  .amdhsa_next_free_sgpr 100
  .amdhsa_accum_offset 256
  .amdhsa_group_segment_fixed_size 0
  .amdhsa_kernarg_size 96
  .amdhsa_user_sgpr_count 2
  .amdhsa_user_sgpr_kernarg_segment_ptr 1
  .amdhsa_system_sgpr_workgroup_id_x 1
.end_amdhsa_kernel
"""
    return a.text(), kd
```

```python
import sys, os
from asmlib import *
import fz
NAME = "gated_mix__mha_block__dense_activation_squared_relu__prompt_kernel"
HDR = open("gated_mix__mha_block__dense_activation_squared_relu__prompt.s.ref").read().split("; Override launch")[0]
tx, kd = fz.gen_fused(NAME, os.environ.get("STAMPS") == "1")
pr = check_hazards(tx)
for p in pr[:40]: print("HAZARD", p)
t = HDR + "; @launch grid=(256,1,1) block=(512,1,1) lds=163840\n"
t += '.amdgcn_target "amdgcn-amd-amdhsa--gfx950"\n.text\n' + tx + '\n.section .rodata,"a"\n.p2align 6' + kd
open(sys.argv[1], "w").write(t)
```

```python
from asmlib import *
from k1 import WS_Q, WS_K, WS_V, WS_O, WS_H, WS_G, WS_SIZE, srd, f32hex
import p1
from p1 import FQ, FH, FO, EPOCH, S_TAG, SRD_WS
import os
OPT = set(os.environ.get('FZOPT', '').split(','))

RING = 131072
QST = 143360
F0 = 20
NF = 43
LEAD = 3
PF0 = int(os.environ.get('PF0', '7'))
FTX = int(os.environ.get('FTX', '0'))
QSLEEP = int(os.environ.get('QSLEEP', '6'))
OSLEEP = int(os.environ.get('OSLEEP', '2'))
OUTMOD = os.environ.get('OUTMOD', '')
TIMEOUT = 1 << 14
HSC = '' if 'hplain' in OPT else ' sc1'
KSC = '' if 'kplain' in OPT else ' sc1'

def poll(a, name, uid, soffs, voff, vt, st, sleep=2):
    lab = f"L_{name}_poll{uid}"
    a(f"s_mov_b32 s{st}, {TIMEOUT}")
    a.label(lab)
    for i, so in enumerate(soffs):
        a(f"buffer_load_dword v{vt+i}, v{voff}, s[{SRD_WS}:{SRD_WS+3}], s{so} offen sc1")
    a("s_waitcnt vmcnt(0)")
    for i in range(len(soffs)):
        a(f"v_cmp_ne_u32 s[{st+2+2*i}:{st+3+2*i}], s{S_TAG}, v{vt+i}")
    a("s_nop 1")
    for i in range(1, len(soffs)):
        a(f"s_or_b64 s[{st+2}:{st+3}], s[{st+2}:{st+3}], s[{st+2+2*i}:{st+3+2*i}]")
    a(f"s_cmp_eq_u64 s[{st+2}:{st+3}], 0")
    a(f"s_cbranch_scc1 {lab}_ok")
    a(f"s_sleep {sleep}")
    a(f"s_sub_u32 s{st}, s{st}, 1")
    a(f"s_cmp_lg_u32 s{st}, 0")
    a(f"s_cbranch_scc1 {lab}")
    a.label(f"{lab}_ok")
    a.vm = []

def attn_ids(a):
    a("s_and_b32 s40, s2, 7")
    a("s_lshl_b32 s41, s40, 2")
    a("s_lshr_b32 s42, s2, 3")
    a("s_and_b32 s43, s42, 3")
    a("s_add_u32 s41, s41, s43")
    a("s_lshr_b32 s44, s2, 5")
    a("s_lshl_b32 s45, s41, 16")

def gen_fused(name, stamps=False):
    a = Asm(); a.stamps = stamps; a.realtime = 'rt' in OPT
    SRD_W2, SRD_B2, SRD_WO, SRD_OUT = 12, 16, 24, 28
    AKV, AKV2, AW, VWOFF, VL16 = 2, 3, 4, 5, 6
    AKV0 = 6
    G = 7
    Q = 8; KF = 12; V0 = 16; V1 = 20; P = 28; WF = 36
    S = [40, 56]; O = 72; ACC = 88; HF = 104
    TMP = 120
    OF = 136
    ACA = 200
    def code_prefetch(a):
        if 'nocodepf' in OPT: return
        a("s_cmp_lg_u32 s3, 7")
        a(f"s_cbranch_scc1 L_{name}_nocpf")
        a("s_getpc_b64 s[46:47]")
        a.label(f"L_{name}_pcbase")
        a(f"s_sub_u32 s52, s46, L_{name}_pcbase-{name}")
        a("s_subb_u32 s53, s47, 0")
        a(f"s_mov_b32 s54, L_{name}_codeend-{name}")
        a("s_mov_b32 s55, 0x20000")
        a("s_lshr_b32 s56, s2, 3")
        a("s_mul_i32 s56, s56, 16")
        a("v_add_u32 v1, s56, v0")
        a("v_lshlrev_b32 v1, 7, v1")
        a("s_mov_b64 exec, 0xffff")
        a("buffer_load_dword v254, v1, s[52:55], 0 offen")
        a("s_mov_b64 exec, -1")
        a.label(f"L_{name}_nocpf")

    a.raw(f".globl {name}\n.p2align 8\n.type {name},@function\n{name}:")
    a("s_cmp_ge_u32 s2, 256")
    a(f"s_cbranch_scc1 L_{name}_end")
    a.rstamp(12); a.stamp(0)
    if 'dbgspan' in OPT:
        a("s_memrealtime s[84:85]")
        a("s_memtime s[86:87]")
        a("s_load_dwordx2 s[88:89], s[0:1], 80")
        a("s_waitcnt lgkmcnt(0)")
    a("s_load_dwordx4 s[92:95], s[0:1], 48")
    a("s_load_dwordx2 s[96:97], s[0:1], 16")
    a("s_load_dwordx2 s[98:99], s[0:1], 72")
    p1.prologue_common(a, name)
    code_prefetch(a)
    def loader_tail(a):
        a("s_mov_b32 s34, 0")
        attn_ids(a)
        a("s_lshr_b32 s46, s41, 1")
        a("s_lshl_b32 s46, s46, 8")
        a(f"s_add_u32 s46, s46, 0x{FQ:x}")
        a("v_min_u32 v2, 47, v0")
        a("v_lshlrev_b32 v2, 2, v2")
        a.stamp(7)
        poll(a, name, "q", [46], 2, 3, 52, sleep=QSLEEP)
        a.stamp(8)
        a("v_lshlrev_b32 v2, 4, v0")
        a("s_sub_u32 s50, s3, 4")
        a("s_lshl_b32 s51, s50, 11")
        a("s_add_u32 s47, s45, s51")
        a("s_lshl_b32 s46, s44, 13")
        a("s_add_u32 s46, s46, s47")
        a("s_lshl_b32 s49, s50, 12")
        for i in range(2):
            a(f"s_add_u32 m0, s49, {i*2048}")
            a(f"s_add_u32 s48, s47, 0x{WS_K + i*1024:x}")
            a.vmem(f"buffer_load_dwordx4 v2, s[{SRD_WS}:{SRD_WS+3}], s48 offen sc1 lds")
            a(f"s_add_u32 m0, s51, {QST + i*1024}")
            a(f"s_add_u32 s48, s46, {i*1024}")
            a.vmem(f"buffer_load_dwordx4 v2, s[{SRD_WS}:{SRD_WS+3}], s48 offen sc1 lds")
            a(f"s_add_u32 m0, s49, {i*2048 + 1024}")
            a(f"s_add_u32 s48, s47, 0x{WS_V + i*1024:x}")
            a.vmem(f"buffer_load_dwordx4 v2, s[{SRD_WS}:{SRD_WS+3}], s48 offen sc1 lds")
        a.wait_vm()
        a.stamp(9)

    p1.gen_phase1(a, name, f"L_{name}_p2", loader_tail=loader_tail, defer_h=True)
    a.label(f"L_{name}_p2")
    a.vm = ["hst"]; a.lg = []
    attn_ids(a)
    srd(a, SRD_W2, 92, 1376*1024)
    srd(a, SRD_B2, 94, 1024)
    srd(a, SRD_WO, 96, 512*1024)
    srd(a, SRD_OUT, 98, 2048*1024)
    a(f"v_lshlrev_b32 v{VL16}, 4, v0")
    a("s_and_b32 s48, s3, 3")
    a("s_lshr_b32 s49, s3, 2")
    a("s_lshl_b32 s50, s49, 21")
    a("s_add_u32 s50, s50, s45")
    a("s_lshl_b32 s51, s48, 10")
    a("s_add_u32 s50, s50, s51")
    a(f"s_add_u32 s50, s50, 0x{WS_K:x}")
    a("s_lshl_b32 s51, s48, 11")
    a("s_lshl_b32 s52, s49, 10")
    a("s_add_u32 s51, s51, s52")
    def kvload(c):
        a(f"s_add_u32 m0, s51, {c*8192}")
        a(f"s_add_u32 s52, s50, {c*4096}")
        a.vmem(f"buffer_load_dwordx4 v{VL16}, s[{SRD_WS}:{SRD_WS+3}], s52 offen{KSC} lds", ("kv", c))
    a("s_lshr_b32 s55, s3, 1")
    a("s_and_b32 s55, s55, 1")
    a(f"s_xor_b32 s56, s44, {FTX}")
    a("s_lshl_b32 s56, s56, 7")
    a("s_lshl_b32 s57, s55, 6")
    a("s_add_u32 s56, s56, s57")
    a("v_lshrrev_b32 v1, 5, v0")
    a("v_lshlrev_b32 v1, 3, v1")
    for q in range(4):
        a.vmem(f"buffer_load_dwordx2 v[{HF+2*q}:{HF+2*q+1}], v1, s[{SRD_B2}:{SRD_B2+3}], s56 offen offset:{16*q}", "b2")
    a(f"v_add_u32 v{AKV}, {(20 - 1)*2048}, v{VL16}")
    a(f"v_add_u32 v{AKV2}, 0x10000, v{VL16}")
    a("v_and_b32 v1, 15, v0")
    a("v_lshrrev_b32 v1, 2, v1")
    a(f"v_lshrrev_b32 v{TMP+8}, 5, v0")
    a(f"v_lshlrev_b32 v{TMP+8}, 2, v{TMP+8}")
    a(f"v_add_u32 v1, v1, v{TMP+8}")
    a("v_lshlrev_b32 v1, 6, v1")
    a(f"v_lshrrev_b32 v{TMP+8}, 4, v0")
    a(f"v_and_b32 v{TMP+8}, 1, v{TMP+8}")
    a(f"v_lshlrev_b32 v{TMP+8}, 5, v{TMP+8}")
    a(f"v_add_u32 v1, v1, v{TMP+8}")
    a(f"v_and_b32 v{TMP+8}, 3, v0")
    a(f"v_lshlrev_b32 v{TMP+8}, 3, v{TMP+8}")
    a(f"v_add_u32 v{TMP+9}, v1, v{TMP+8}")
    a("s_lshl_b32 s58, s3, 12")
    a(f"s_add_u32 s58, s58, {RING}")
    a(f"v_add_u32 v{AW}, s58, v{TMP+9}")
    a(f"v_mov_b32 v{G}, v{TMP+9}")
    a("v_lshrrev_b32 v1, 2, v0")
    a("v_lshlrev_b32 v1, 10, v1")
    a(f"v_and_b32 v{TMP+8}, 3, v0")
    a(f"v_lshlrev_b32 v{TMP+8}, 4, v{TMP+8}")
    a(f"v_add_u32 v{VWOFF}, v1, v{TMP+8}")
    a("s_mul_i32 s59, s49, 43")
    a("s_lshl_b32 s60, s59, 14")
    a("s_add_u32 s60, s60, s56")
    a("s_lshl_b32 s61, s41, 1")
    a("s_and_b32 s62, s3, 1")
    a("s_add_u32 s61, s61, s62")
    a("s_mov_b32 s37, s61")
    a(f"s_mul_i32 s61, s61, {86*1024}")
    a("s_lshl_b32 s62, s59, 10")
    a("s_add_u32 s61, s61, s62")
    a(f"s_add_u32 s61, s61, 0x{WS_H:x}")
    a("v_and_b32 v1, 27, v0")
    a("v_cmp_eq_u32 vcc, 16, v1")
    a(f"v_mov_b32 v{TMP+8}, 0x3f803f80")
    a("v_mov_b32 v1, 0")
    a(f"v_cndmask_b32 v1, v1, v{TMP+8}, vcc")
    for r in list(range(V0, V0+4)) + list(range(V1, V1+4)):
        a(f"v_mov_b32 v{r}, v1")
    a("s_mov_b32 s32, 0x0000ffff")
    a("s_mov_b32 s33, 0x0000ffff")
    a("s_lshl_b32 s52, s3, 10")
    a(f"s_add_u32 s52, s52, {QST}")
    a(f"v_add_u32 v1, s52, v{VL16}")
    a.stamp(10)
    a("s_barrier")
    a.lds(f"ds_read_b128 v[{Q}:{Q+3}], v1", "Q")

    def bias_init():
        a.wait_vm("b2")
        for q in range(4):
            r = HF + 2*q
            a(f"v_lshlrev_b32 v{ACC+4*q}, 16, v{r}")
            a(f"v_and_b32 v{ACC+4*q+1}, 0xffff0000, v{r}")
            a(f"v_lshlrev_b32 v{ACC+4*q+2}, 16, v{r+1}")
            a(f"v_and_b32 v{ACC+4*q+3}, 0xffff0000, v{r+1}")
        a("s_cmp_eq_u32 s49, 0")
        a(f"s_cbranch_scc1 L_{name}_biasok")
        for r in range(16): a(f"v_mov_b32 v{ACC+r}, 0")
        a.label(f"L_{name}_biasok")

    LOOP0, LOOP1 = 20, 60
    inloop = [False]
    def kaddr(t, extra=0):
        if inloop[0]:
            off = (t - LOOP0 + 1)*2048 + extra
            return f"v{AKV} offset:{off}"
        off = t*2048 + extra
        if off < 65536: return f"v{AKV0} offset:{off}"
        return f"v{AKV2} offset:{off-65536}"
    def readK(t):
        a.lds(f"ds_read_b128 v[{KF}:{KF+3}], {kaddr(t)}", ("K", t))
    def readV(t0, t1):
        a("s_mov_b64 exec, s[32:33]")
        if t0 is not None: a.lds(f"ds_read_b128 v[{V0}:{V0+3}], {kaddr(t0, 1024)}", ("V0", t0))
        if t1 is not None: a.lds(f"ds_read_b128 v[{V1}:{V1+3}], {kaddr(t1, 1024+256)}", ("V1", t1))
        a("s_mov_b64 exec, -1")
    def QK(t):
        sb = S[t & 1]
        a(f"v_mfma_f32_32x32x16_bf16 v[{sb}:{sb+15}], v[{KF}:{KF+3}], v[{Q}:{Q+3}], 0")
    def PV0(t):
        C = "0" if t == 0 else f"v[{O}:{O+15}]"
        a(f"v_mfma_f32_32x32x16_bf16 v[{O}:{O+15}], v[{V0}:{V0+3}], v[{P}:{P+3}], {C}")
    def PV1(t):
        a(f"v_mfma_f32_32x32x16_bf16 v[{O}:{O+15}], v[{V1}:{V1+3}], v[{P+4}:{P+7}], v[{O}:{O+15}]")
    uid = [0]
    def group_barrier(grp, tag):
        uid[0] += 1
        lab = f"L_{name}_gb{uid[0]}"
        a(f"s_cmp_eq_u32 s49, {grp}")
        a(f"s_cbranch_scc0 {lab}")
        save = list(a.vm)
        if tag is not None: a.wait_vm(tag)
        a("s_barrier")
        a.label(lab)
        a.vm = save
    BARS = {7: ("kv", 8), 12: ("kv", 15)}
    WOIT = 6
    def cond_block(key, body):
        uid[0] += 1
        lab = f"L_{name}_cb{uid[0]}"
        a(f"s_cmp_eq_u32 s35, {WOIT}")
        a(f"s_cbranch_scc0 {lab}")
        save = list(a.vm)
        body()
        a.label(lab)
        a.vm = save
    def wo_loads(lo, hi):
        for i in range(lo, hi):
            if i == 0:
                a("s_lshl_b32 s38, s3, 13")
                a("s_lshl_b32 s39, s3, 16")
                a(f"s_xor_b32 s52, s44, {FTX}")
                a("s_lshl_b32 s52, s52, 7")
                a("s_add_u32 s39, s39, s52")
            a(f"s_add_u32 m0, s38, {i*1024}")
            a(f"s_add_u32 s52, s39, {(i >> 1)*16384 + (i & 1)*64}")
            a(f"buffer_load_dwordx4 v{VWOFF}, s[{SRD_WO}:{SRD_WO+3}], s52 offen lds")
    kv_next = [2]
    def Y(t):
        a("s_setprio 0")
        if t in BARS: group_barrier(0, BARS[t])
        if inloop[0] and t - LOOP0 == 1: cond_block("b0", lambda: group_barrier(0, None))
        if t + 1 <= 63: readK(t + 1)
        readV(t, t - 1 if t > 0 else None)
        f = t - F0
        if t == 3:
            a("s_cmp_eq_u32 s34, 0")
            a(f"s_cbranch_scc1 L_{name}_nohpub")
            save = list(a.vm)
            a.wait_vm("hst")
            a(f"v_mov_b32 v{TMP}, s{S_TAG}")
            a(f"v_mov_b32 v{TMP+1}, 0")
            a("s_mov_b64 exec, 1")
            a(f"buffer_store_dword v{TMP}, v{TMP+1}, s[{SRD_WS}:{SRD_WS+3}], s34 offen sc1")
            a("s_mov_b64 exec, -1")
            a.label(f"L_{name}_nohpub")
            a.vm = save
        if t == F0 - LEAD - 1:
            a("s_lshl_b32 s46, s37, 6")
            a(f"s_add_u32 s46, s46, 0x{FH:x}")
            a("v_and_b32 v1, 15, v0")
            a("v_lshlrev_b32 v1, 2, v1")
            poll(a, name, "h", [46], 1, TMP, 52)
        if 0 <= f < NF:
            a.wait_vm(("w", f))
            sl = f % 4
            a.lds(f"ds_read_b64_tr_b16 v[{WF}:{WF+1}], v{AW} offset:{sl*1024}", ("W", f))
            a.lds(f"ds_read_b64_tr_b16 v[{WF+2}:{WF+3}], v{AW} offset:{sl*1024+512}", ("W", f))
        if 0 <= f + LEAD < NF:
            g = f + LEAD
            hf = HF + 4*(g % 4)
            a(f"s_add_u32 s52, s61, {g*1024}")
            a.vmem(f"buffer_load_dwordx4 v[{hf}:{hf+3}], v{VL16}, s[{SRD_WS}:{SRD_WS+3}], s52 offen{HSC}", ("h", g))
            a(f"s_add_u32 m0, s58, {(g % 4)*1024}")
            a(f"s_add_u32 s52, s60, {g*16384}")
            a.vmem(f"buffer_load_dwordx4 v{VWOFF}, s[{SRD_W2}:{SRD_W2+3}], s52 offen lds", ("w", g))
        for _ in range(2):
            if kv_next[0] <= 15:
                kvload(kv_next[0]); kv_next[0] += 1
        if 'now2pf' not in OPT and PF0 <= t < PF0 + 8:
            i = t - PF0
            if i == 0:
                a("s_lshr_b32 s38, s2, 3")
                a("s_lshl_b32 s38, s38, 3")
                a("s_add_u32 s38, s38, s3")
                a("s_lshl_b32 s39, s38, 11")
                a("s_mul_i32 s38, s38, 5504")
            if i < 6:
                a(f"s_add_u32 s52, s38, {i*1024}")
                a.vmem(f"buffer_load_dwordx4 v[{TMP+12}:{TMP+15}], v{VL16}, s[{SRD_W2}:{SRD_W2+3}], s52 offen", ("pf", i))
            else:
                a(f"s_add_u32 s52, s39, {(i-6)*1024}")
                a.vmem(f"buffer_load_dwordx4 v[{TMP+12}:{TMP+15}], v{VL16}, s[{SRD_WO}:{SRD_WO+3}], s52 offen", ("pf", i))
        if inloop[0] and t - LOOP0 >= 1:
            j = t - LOOP0
            cond_block("wo", lambda: wo_loads(3*(j - 1), min(8, 3*j)))
        a.wait_lg()
        if (t + 1) in BARS: group_barrier(1, BARS[t + 1])
        if inloop[0] and t - LOOP0 == 0: cond_block("b1", lambda: group_barrier(1, None))
    def X(t):
        sb = S[t & 1]
        e = lambda i: a(f"v_exp_f32 v{sb+i}, v{sb+i}")
        c = lambda i: a(f"v_cvt_pk_bf16_f32 v{P+i}, v{sb+2*i}, v{sb+2*i+1}")
        e(0)
        a("s_setprio 2")
        e(1)
        if t > 0: PV1(t - 1)
        e(2); e(3); e(4); e(5)
        if t < 63: QK(t + 1)
        e(6); e(7); c(0); c(1); c(2); e(8); c(3); e(9); e(10)
        PV0(t)
        e(11); e(12); e(13); e(14)
        f = t - F0
        if 0 <= f < NF:
            hf = HF + 4*(f % 4)
            a(f"v_mfma_f32_32x32x16_bf16 v[{ACC}:{ACC+15}], v[{WF}:{WF+3}], v[{hf}:{hf+3}], v[{ACC}:{ACC+15}]")
        e(15); c(4); c(5); c(6); c(7)

    readK(0)
    a.wait_lg()
    QK(0)
    a("s_nop 7")
    def tile(t):
        Y(t)
        if t == 2: bias_init()
        X(t)
        if 'p3st' in OPT:
            if t == 19: a.stamp(11)
            if t == 7: a.stamp(8)
    for t in range(0, LOOP0): tile(t)
    a("s_mov_b32 s35, 10")
    a.label(f"L_{name}_loop")
    inloop[0] = True
    vm_entry = list(a.vm)
    for t in range(LOOP0, LOOP0 + 4):
        if t == LOOP0 + 3:
            pass
        Y(t)
        if t == LOOP0 + 3:
            a("s_add_u32 s61, s61, 4096")
            a("s_add_u32 s60, s60, 65536")
            a("s_sub_u32 s35, s35, 1")
        X(t)
    a(f"v_add_u32 v{AKV}, 8192, v{AKV}")
    a("s_cmp_lg_u32 s35, 0")
    a(f"s_cbranch_scc1 L_{name}_loop")
    inloop[0] = False
    shift = LOOP1 - LOOP0 - 4
    a.vm = [(x[0], x[1] + shift) if isinstance(x, tuple) and x[0] in ("h", "w") else x for x in a.vm]
    if 'p3st' in OPT: a.stamp(7)
    for t in range(LOOP1, 64): tile(t)
    a("s_setprio 0")
    readV(None, 63)
    a.wait_lg()
    a("s_nop 1")
    PV1(63)
    a("s_nop 15")
    a(f"v_add_f32 v1, |v{O}|, |v{O+1}|")
    for r in range(2, 8):
        a(f"v_add_f32 v1, v1, |v{O+r}|")
    a(f"s_mov_b32 s40, {f32hex(2.0**-60)}")
    a(f"s_mov_b32 s42, {f32hex(2.0**60)}")
    a(f"s_mov_b32 s43, {f32hex(2.0**120)}")
    a(f"v_cmp_lt_f32 s[46:47], s40, v{O+8}")
    a(f"v_cmp_gt_f32 s[52:53], s42, v{O+8}")
    a(f"v_cmp_gt_f32 s[54:55], s43, v1")
    a("s_nop 1")
    a("s_and_b64 s[46:47], s[46:47], s[52:53]")
    a("s_and_b64 s[46:47], s[46:47], s[54:55]")
    a("s_cmp_eq_u64 s[46:47], -1")
    a(f"s_cbranch_scc0 L_{name}_slow")
    a.label(f"L_{name}_fin")
    a(f"v_rcp_f32 v1, v{O+8}")
    a("s_nop 0")
    for r in range(8): a(f"v_mul_f32 v{O+r}, v{O+r}, v1")
    for q in range(4): a(f"v_cvt_pk_bf16_f32 v{P+q}, v{O+2*q}, v{O+2*q+1}")
    a("s_lshl_b32 s46, s44, 3")
    a("s_add_u32 s46, s46, s3")
    a("s_lshl_b32 s47, s46, 5")
    a("s_add_u32 s47, s47, s41")
    a("s_lshl_b32 s48, s47, 10")
    a(f"s_add_u32 s48, s48, 0x{WS_O:x}")
    a(f"buffer_store_dwordx4 v[{P}:{P+3}], v{VL16}, s[{SRD_WS}:{SRD_WS+3}], s48 offen sc1")
    a("s_lshl_b32 s47, s47, 2")
    a(f"s_add_u32 s47, s47, 0x{FO:x}")
    p1.publish(a, 47, TMP)
    a.vm = []
    if 'p3st' in OPT: a.stamp(1)
    a("s_cmp_lg_u32 s3, 0")
    a(f"s_cbranch_scc1 L_{name}_nopollo")
    a("s_lshl_b32 s46, s41, 8")
    a(f"s_add_u32 s46, s46, 0x{FO:x}")
    a("v_lshlrev_b32 v1, 2, v0")
    poll(a, name, "o", [46], 1, TMP, 52, sleep=OSLEEP)
    a.label(f"L_{name}_nopollo")
    a("s_barrier")
    if 'p3st' in OPT: a.stamp(2)
    a("s_lshl_b32 s46, s41, 16")
    a("s_lshl_b32 s47, s3, 13")
    a("s_add_u32 s46, s46, s47")
    a(f"s_add_u32 s46, s46, 0x{WS_O:x}")
    a("s_add_u32 s47, s47, 65536")
    for i in range(8):
        a(f"s_add_u32 m0, s47, {i*1024}")
        a(f"s_add_u32 s48, s46, {i*1024}")
        a.vmem(f"buffer_load_dwordx4 v{VL16}, s[{SRD_WS}:{SRD_WS+3}], s48 offen sc1 lds", ("o", i))
    a("v_and_b32 v1, 31, v0")
    a(f"v_lshlrev_b32 v{TMP}, 2, v1")
    a("s_lshl_b32 s47, s37, 7")
    a(f"s_add_u32 s47, s47, 0x{WS_G:x}")
    a.vmem(f"buffer_load_dword v{TMP+1}, v{TMP}, s[{SRD_WS}:{SRD_WS+3}], s47 offen sc1", "g")
    a("s_lshl_b32 s47, s49, 15")
    a("s_lshr_b32 s48, s3, 1")
    a("s_and_b32 s48, s48, 1")
    a("s_lshl_b32 s48, s48, 10")
    a("s_add_u32 s47, s47, s48")
    a(f"v_add_u32 v{AW}, s47, v{G}")
    a("s_and_b32 s47, s3, 1")
    a("s_lshl_b32 s47, s47, 15")
    a("s_lshl_b32 s48, s49, 14")
    a("s_add_u32 s47, s47, s48")
    a("s_add_u32 s47, s47, 65536")
    a(f"v_add_u32 v{AKV}, s47, v{VL16}")
    order = [i for i in range(16) if (i & 7) < 4] + [i for i in range(16) if (i & 7) >= 4]
    def rdw(k):
        i = order[k]
        r = OF + 8*(k % 4)
        a.lds(f"ds_read_b64_tr_b16 v[{r}:{r+1}], v{AW} offset:{i*2048}", ("W3", k))
        a.lds(f"ds_read_b64_tr_b16 v[{r+2}:{r+3}], v{AW} offset:{i*2048+512}", ("W3", k))
        a.lds(f"ds_read_b128 v[{r+4}:{r+7}], v{AKV} offset:{i*1024}", ("W3", k))
    def mm(k):
        a.wait_lg(("W3", k))
        r = OF + 8*(k % 4)
        C = "0" if k == 0 else f"v[{ACA}:{ACA+15}]"
        a(f"v_mfma_f32_32x32x16_bf16 v[{ACA}:{ACA+15}], v[{r}:{r+3}], v[{r+4}:{r+7}], {C}")
    a.wait_vm(("o", 3))
    a("s_barrier")
    if 'p3st' in OPT: a.stamp(9)
    rdw(0); rdw(1); rdw(2)
    for k in range(8):
        if k + 3 < 8: rdw(k + 3)
        if k == 5:
            a.wait_vm(("o", 7))
            a("s_barrier")
            rdw(8)
        if k == 6: rdw(9)
        if k == 7: rdw(10)
        mm(k)
    for k in range(8, 16):
        if k + 3 < 16: rdw(k + 3)
        mm(k)
    a.wait_vm()
    a("v_lshlrev_b32 v1, 10, v1")
    a(f"v_lshrrev_b32 v{TMP+2}, 5, v0")
    a(f"v_lshlrev_b32 v{TMP+2}, 4, v{TMP+2}")
    a(f"v_add_u32 v{TMP+2}, v1, v{TMP+2}")
    a("s_lshl_b32 s46, s37, 15")
    a("s_add_u32 s46, s46, s56")
    a("s_nop 7")
    a("s_nop 3")
    for r in range(16):
        a(f"v_sub_f32 v{ACA+r}, v{ACA+r}, v{ACC+r}")
    for r in range(16):
        a(f"v_fma_f32 v{ACA+r}, v{TMP+1}, v{ACA+r}, v{ACC+r}")
    a(f"v_add_u32 v1, s58, v{VL16}")
    a("s_cmp_eq_u32 s49, 0")
    a(f"s_cbranch_scc1 L_{name}_red0")
    for q in range(4):
        a(f"ds_write_b128 v1, v[{ACA+4*q}:{ACA+4*q+3}] offset:{q*1024}")
    a("s_waitcnt lgkmcnt(0)")
    a("s_barrier")
    if 'p3st' in OPT: a.stamp(3)
    a.dump_stamps(12, SRD_WS)
    a("s_endpgm")
    a.label(f"L_{name}_red0")
    a("s_barrier")
    for q in range(4):
        a(f"ds_read_b128 v[{OF+4*q}:{OF+4*q+3}], v1 offset:{4*4096 + q*1024}")
    a("s_waitcnt lgkmcnt(0)")
    for r in range(16): a(f"v_add_f32 v{ACA+r}, v{ACA+r}, v{OF+r}")
    B = OF + 16
    for q in range(4):
        a(f"v_cvt_pk_bf16_f32 v{B+2*q}, v{ACA+4*q}, v{ACA+4*q+1}")
        a(f"v_cvt_pk_bf16_f32 v{B+2*q+1}, v{ACA+4*q+2}, v{ACA+4*q+3}")
    a("s_nop 1")
    for qp in range(2):
        a(f"v_permlane32_swap_b32 v{B+4*qp}, v{B+4*qp+2}")
        a(f"v_permlane32_swap_b32 v{B+4*qp+1}, v{B+4*qp+3}")
    for qp in range(2):
        a(f"buffer_store_dwordx4 v[{B+4*qp}:{B+4*qp+3}], v{TMP+2}, s[{SRD_OUT}:{SRD_OUT+3}], s46 offen offset:{qp*32} {OUTMOD}")
    if 'dbgspan' in OPT:
        a("s_cmp_lg_u32 s3, 0")
        a(f"s_cbranch_scc1 L_{name}_nodbg")
        a("s_memrealtime s[80:81]")
        a("s_memtime s[82:83]")
        a("s_waitcnt lgkmcnt(0)")
        a("s_mov_b32 s68, s88")
        a("s_mov_b32 s69, s89")
        a("s_mov_b32 s70, 256")
        a("s_mov_b32 s71, 0x20000")
        a("s_not_b32 s72, s84")
        a("s_sub_u32 s73, s80, s84")
        a("s_sub_u32 s74, s82, s86")
        a(f"v_mov_b32 v{TMP}, 0")
        a(f"v_mov_b32 v{TMP+1}, s80")
        a(f"v_mov_b32 v{TMP+3}, s72")
        a(f"v_mov_b32 v{TMP+4}, s73")
        a(f"v_mov_b32 v{TMP+5}, s74")
        a("s_mov_b64 exec, 1")
        a(f"buffer_atomic_umax v{TMP+1}, v{TMP}, s[68:71], 0 offen offset:0")
        a(f"buffer_atomic_umax v{TMP+3}, v{TMP}, s[68:71], 0 offen offset:4")
        a(f"buffer_atomic_umax v{TMP+4}, v{TMP}, s[68:71], 0 offen offset:8")
        a(f"buffer_atomic_umax v{TMP+5}, v{TMP}, s[68:71], 0 offen offset:12")
        a("s_mov_b64 exec, -1")
        a.label(f"L_{name}_nodbg")
    a("s_or_b32 s47, s2, s3")
    a("s_cmp_lg_u32 s47, 0")
    a(f"s_cbranch_scc1 L_{name}_noep")
    a(f"s_mov_b32 s47, 0x{EPOCH:x}")
    a(f"v_mov_b32 v{TMP}, s{S_TAG}")
    a(f"v_mov_b32 v{TMP+1}, 0")
    a("s_mov_b64 exec, 1")
    a(f"buffer_store_dword v{TMP}, v{TMP+1}, s[{SRD_WS}:{SRD_WS+3}], s47 offen sc1")
    a("s_mov_b64 exec, -1")
    a.label(f"L_{name}_noep")
    if 'p3st' in OPT: a.stamp(3)
    a.dump_stamps(12, SRD_WS)
    a.label(f"L_{name}_end")
    a("s_endpgm")
    a.label(f"L_{name}_slow")
    M = TMP
    sb = S[0]
    a(f"v_mov_b32 v{M}, 0xff800000")
    a(f"s_add_u32 s46, s45, 0x{WS_K:x}")
    a("s_mov_b32 s40, 64")
    a.label(f"L_{name}_s1")
    a(f"buffer_load_dwordx4 v[{KF}:{KF+3}], v{VL16}, s[{SRD_WS}:{SRD_WS+3}], s46 offen sc1")
    a("s_waitcnt vmcnt(0)")
    a(f"v_mfma_f32_32x32x16_bf16 v[{sb}:{sb+15}], v[{KF}:{KF+3}], v[{Q}:{Q+3}], 0")
    a("s_nop 15")
    for i in range(8):
        a(f"v_max3_f32 v{M}, v{sb+2*i}, v{sb+2*i+1}, v{M}")
    a("s_add_u32 s46, s46, 1024")
    a("s_sub_u32 s40, s40, 1")
    a("s_cmp_lg_u32 s40, 0")
    a(f"s_cbranch_scc1 L_{name}_s1")
    a(f"v_mov_b32 v{M+2}, v{M}")
    a("s_nop 1")
    a(f"v_permlane32_swap_b32 v{M}, v{M+2}")
    a("s_nop 1")
    a(f"v_max_f32 v{M}, v{M}, v{M+2}")
    for r in range(16): a(f"v_mov_b32 v{O+r}, 0")
    a(f"s_add_u32 s46, s45, 0x{WS_K:x}")
    a(f"s_add_u32 s47, s45, 0x{WS_V:x}")
    a("s_mov_b32 s40, 64")
    a.label(f"L_{name}_s2")
    a(f"buffer_load_dwordx4 v[{KF}:{KF+3}], v{VL16}, s[{SRD_WS}:{SRD_WS+3}], s46 offen sc1")
    a("s_mov_b64 exec, s[32:33]")
    a(f"buffer_load_dwordx4 v[{V0}:{V0+3}], v{VL16}, s[{SRD_WS}:{SRD_WS+3}], s47 offen sc1")
    a(f"buffer_load_dwordx4 v[{V1}:{V1+3}], v{VL16}, s[{SRD_WS}:{SRD_WS+3}], s47 offen offset:256 sc1")
    a("s_mov_b64 exec, -1")
    a("s_waitcnt vmcnt(0)")
    a(f"v_mfma_f32_32x32x16_bf16 v[{sb}:{sb+15}], v[{KF}:{KF+3}], v[{Q}:{Q+3}], 0")
    a("s_nop 15")
    for i in range(16): a(f"v_sub_f32 v{sb+i}, v{sb+i}, v{M}")
    for i in range(16): a(f"v_exp_f32 v{sb+i}, v{sb+i}")
    a("s_nop 0")
    for i in range(8): a(f"v_cvt_pk_bf16_f32 v{P+i}, v{sb+2*i}, v{sb+2*i+1}")
    a("s_nop 1")
    a(f"v_mfma_f32_32x32x16_bf16 v[{O}:{O+15}], v[{V0}:{V0+3}], v[{P}:{P+3}], v[{O}:{O+15}]")
    a(f"v_mfma_f32_32x32x16_bf16 v[{O}:{O+15}], v[{V1}:{V1+3}], v[{P+4}:{P+7}], v[{O}:{O+15}]")
    a("s_add_u32 s46, s46, 1024")
    a("s_add_u32 s47, s47, 1024")
    a("s_sub_u32 s40, s40, 1")
    a("s_cmp_lg_u32 s40, 0")
    a(f"s_cbranch_scc1 L_{name}_s2")
    a("s_nop 15")
    a(f"s_branch L_{name}_fin")
    a.label(f"L_{name}_codeend")
    kd = f"""
.amdhsa_kernel {name}
  .amdhsa_next_free_vgpr 256
  .amdhsa_next_free_sgpr 100
  .amdhsa_accum_offset 256
  .amdhsa_group_segment_fixed_size 0
  .amdhsa_kernarg_size 96
  .amdhsa_user_sgpr_count 2
  .amdhsa_user_sgpr_kernarg_segment_ptr 1
  .amdhsa_system_sgpr_workgroup_id_x 1
.end_amdhsa_kernel
"""
    return a.text(), kd
```
